```python
import torch

def _softmax(x, axis=-1):
    return torch.softmax(x, dim=axis)
def _gelu(x):
    return torch.nn.functional.gelu(x, approximate="tanh")
def _silu(x):
    return torch.nn.functional.silu(x)
def _sigmoid(x):
    return torch.sigmoid(x)
def _layernorm(x, axis=-1, eps=1e-5):
    m = x.mean(dim=axis, keepdim=True)
    v = x.var(dim=axis, keepdim=True, unbiased=False)
    return (x - m) / torch.sqrt(v + eps)
def _scatter_add(tgt, idx, src, axis=0):
    return tgt.clone().index_add_(axis, idx, src)
def _segment_sum(src, seg, n):
    out = torch.zeros((n,) + src.shape[1:], dtype=src.dtype)
    return out.index_add_(0, seg, src)
def _pad(x, pw):
    flat = tuple(v for pair in reversed(pw) for v in pair)
    return torch.nn.functional.pad(x, flat)

kernel_name = 'parallel_sum__gqa_block_cached__glu_gated_geglu__decode'

def setup_inputs():

    _w = (lambda a: (lambda t: t.to(torch.bfloat16) if t.is_floating_point() else t)(torch.as_tensor(a)))
    def _A_setup():
        B, Sq, D = 4, 1, 448
        Hq, Hkv, Sk, Dh = 16, 8, 8192, 256
        assert Hq % Hkv == 0, (Hq, Hkv)
        return {
            "x": _w((lambda *s: torch.randn(*s, dtype=torch.bfloat16) * 0.05)(B, Sq, D)),
            "k_cache": _w((lambda *s: torch.randn(*s, dtype=torch.bfloat16) * 1.6)(B, Hkv, Sk, Dh)),
            "v_cache": _w((lambda *s: torch.randn(*s, dtype=torch.bfloat16) * 0.8)(B, Hkv, Sk, Dh)),
            "wq": _w((lambda *s: torch.randn(*s, dtype=torch.bfloat16) * 1.6)(D, Hq * Dh) * (D ** -0.5)),
            "wo": _w((lambda *s: torch.randn(*s, dtype=torch.bfloat16) * 0.8)(Hq * Dh, D) * ((Hq * Dh) ** -0.5)),
        }
    _A_in = _A_setup()

    def _B_setup():
        B, S, Dm, Df = 4, 1, 448, 1792
        return {
            "x": _w((lambda *s: torch.randn(*s, dtype=torch.bfloat16) * 0.05)(B, S, Dm)),
            "w_gate": _w((lambda *s: torch.randn(*s, dtype=torch.bfloat16) * 0.4)(Dm, Df) * (Dm ** -0.5)),
            "w_up": _w((lambda *s: torch.randn(*s, dtype=torch.bfloat16) * 0.4)(Dm, Df) * (Dm ** -0.5)),
            "w_down": _w((lambda *s: torch.randn(*s, dtype=torch.bfloat16) * 0.4)(Df, Dm) * (Df ** -0.5)),
        }
    _B_in = _B_setup()

    return {
        "A_x": _A_in["x"],
        "A_k_cache": _A_in["k_cache"],
        "A_v_cache": _A_in["v_cache"],
        "A_wq": _A_in["wq"],
        "A_wo": _A_in["wo"],
        "B_x": _B_in["x"],
        "B_w_gate": _B_in["w_gate"],
        "B_w_up": _B_in["w_up"],
        "B_w_down": _B_in["w_down"],
    }

def reference(A_x, A_k_cache, A_v_cache, A_wq, A_wo, B_x, B_w_gate, B_w_up, B_w_down):
    def _A_ref(x, k_cache, v_cache, wq, wo):
        B, Sq, D = x.shape
        Hq, Dh = 16, 256
        Hkv = k_cache.shape[1]
        rep = Hq // Hkv
        q = (lambda x, *d: x.permute(*d))((x @ wq).reshape(B, Sq, Hq, Dh), 0, 2, 1, 3)
        k = (lambda x, n, axis: torch.repeat_interleave(x, n, dim=axis))(k_cache, rep, axis=1)
        v = (lambda x, n, axis: torch.repeat_interleave(x, n, dim=axis))(v_cache, rep, axis=1)
        scores = torch.einsum("bhqd,bhkd->bhqk", q, k) * (Dh ** -0.5)
        p = _softmax(scores, axis=-1)
        o = torch.einsum("bhqk,bhkd->bhqd", p, v)
        return (lambda x, *d: x.permute(*d))(o, 0, 2, 1, 3).reshape(B, Sq, Hq * Dh) @ wo

    def _B_ref(x, w_gate, w_up, w_down):
        g = torch.einsum("bsd,df->bsf", x, w_gate)
        u = torch.einsum("bsd,df->bsf", x, w_up)
        h = _gelu(g) * u
        return torch.einsum("bsf,fd->bsd", h, w_down)

    x = A_x
    xn = _layernorm(x, axis=-1)
    return x + _A_ref(xn, A_k_cache, A_v_cache, A_wq, A_wo) + _B_ref(xn, B_w_gate, B_w_up, B_w_down)
```

```python
KN = "parallel_sum__gqa_block_cached__glu_gated_geglu__decode"

class Asm:
    stamps = False
    def __init__(self):
        self.l = []
    def __call__(self, s):
        for x in s.split("\n"):
            x = x.strip()
            if x.startswith("STAMP"):
                if Asm.stamps:
                    i = int(x[5:])
                    self.l.append(f"  s_memrealtime s[{72+2*i}:{73+2*i}]")
                    self.l.append("  s_waitcnt lgkmcnt(0)")
            elif x.startswith("EXEC "):
                m = int(x[5:], 16)
                self.l.append(f"  s_mov_b32 exec_lo, 0x{m & 0xffffffff:x}")
                self.l.append(f"  s_mov_b32 exec_hi, 0x{m >> 32:x}")
            elif x:
                self.l.append(("" if x.endswith(":") else "  ") + x)
    def c(self, s):
        self.l.append("  ; " + s)
    def text(self):
        return "\n".join(self.l) + "\n"

def vr(a, n=1):
    return f"v{a}" if n == 1 else f"v[{a}:{a+n-1}]"
def sr(a, n=1):
    return f"s{a}" if n == 1 else f"s[{a}:{a+n-1}]"
def ar(a, n=1):
    return f"a{a}" if n == 1 else f"a[{a}:{a+n-1}]"

def srd(A, d, lo, hi, size):
    A(f"s_mov_b32 s{d}, s{lo}")
    A(f"s_and_b32 s{d+1}, s{hi}, 0xffff")
    A(f"s_mov_b32 s{d+2}, {size}")
    A(f"s_mov_b32 s{d+3}, 0x20000")

def xrow_reduce(A, op, v, t):
    A(f"v_mov_b32 v{t}, v{v}")
    A("s_nop 1")
    A(f"v_permlane16_swap_b32 v{t}, v{v}")
    A("s_nop 0")
    A(f"{op} v{v}, v{v}, v{t}")
    A(f"v_mov_b32 v{t}, v{v}")
    A("s_nop 1")
    A(f"v_permlane32_swap_b32 v{t}, v{v}")
    A("s_nop 0")
    A(f"{op} v{v}, v{v}, v{t}")

def row_reduce(A, op, v):
    for r in (8, 4, 2, 1):
        A("s_nop 1")
        A(f"{op}_dpp v{v}, v{v}, v{v} row_ror:{r} row_mask:0xf bank_mask:0xf")

def wave_reduce(A, op, v, t):
    row_reduce(A, op, v)
    xrow_reduce(A, op, v, t)

def kernel_header(A, name):
    A.l.append(f".globl {name}")
    A.l.append(".p2align 8")
    A.l.append(f".type {name},@function")
    A.l.append(f"{name}:")

def kernel_desc(name, nvgpr, nsgpr, accum=None):
    if accum is None:
        accum = (nvgpr + 3) // 4 * 4
    return f""".p2align 6
.amdhsa_kernel {name}
  .amdhsa_next_free_vgpr {nvgpr}
  .amdhsa_next_free_sgpr {nsgpr}
  .amdhsa_accum_offset {accum}
  .amdhsa_group_segment_fixed_size 0
  .amdhsa_kernarg_size 96
  .amdhsa_user_sgpr_count 2
  .amdhsa_user_sgpr_kernarg_segment_ptr 1
  .amdhsa_system_sgpr_workgroup_id_x 1
  .amdhsa_float_denorm_mode_32 3
  .amdhsa_float_denorm_mode_16_64 3
.end_amdhsa_kernel
"""
```

```python
from asmlib import *
import math, struct, sys
LOG2E = math.log2(math.e)
def f2u(x): return struct.unpack("<I", struct.pack("<f", x))[0]
def fhex(x): return f"0x{f2u(x):08x}"

WS_EPOCH = 0x0
WS_CNT  = 0x1000
WS_Q2   = 0x10000
WS_GU   = WS_Q2 + 16*4096*8
WS_PART = WS_GU + 2*16*1792*8
WS_ML   = WS_PART + 256*512*8
WS_OUT2 = WS_ML + 256*32
WS_STAMP = WS_OUT2 + 32*4*448*8
WS_SIZE = WS_STAMP + 2048*64
L_STG = 131072
L_QL  = L_STG + 28672
L_OB  = L_QL + 1024
L_XN  = L_OB + 1536
L_CNT = L_XN + 896
LDS_BYTES = L_CNT + 64

S_K, S_V, S_WS, S_WA, S_WB, S_X = 8, 12, 16, 20, 24, 28
P_X, P_K, P_V, P_WQ, P_WO, P_BX, P_G, P_U, P_WD, P_OUT, P_DBG, P_WS = 40, 42, 44, 46, 48, 50, 52, 54, 56, 58, 60, 62
S_EP, S_TAG = 64, 65
S_LB = 66
S_SC = 67
S_N2 = 68
S_MK = 69
S_R = 70
S_SPIN = 71
S_PB = 98
S_WI = 99
S_T = 32

class R:
    LANE = 1
    DMA = 2; KA = 10; VA = 14
    T = 22
    M = 32; L = 33; ALPHA = 34; MN = 35; P = 36
    TAGV = 38; IDX = 39
    S = 40
    Q = 44
    KS = 76
    VS = 108
    O = 140
    UG = 204
    CA = 236
    NV = 238

class Cfg:
    W = 8
    nt = True
    S0 = 16
    V0EARLY = 4

def round_bf16(A, v):
    A(f"v_cvt_pk_bf16_f32 v{v}, v{v}, v{v}")
    A(f"v_lshlrev_b32 v{v}, 16, v{v}")

def gelu(A, g, t0, t1):
    A(f"""
    v_mul_f32 v{t0}, v{g}, v{g}
    v_mul_f32 v{t0}, v{t0}, v{g}
    v_mov_b32 v{t1}, {fhex(0.044715)}
    v_fma_f32 v{t0}, v{t0}, v{t1}, v{g}
    v_mul_f32 v{t0}, {fhex(2*0.7978845608028654*LOG2E)}, v{t0}
    v_exp_f32 v{t0}, v{t0}
    s_nop 0
    v_add_f32 v{t0}, 1.0, v{t0}
    v_rcp_f32 v{t0}, v{t0}
    s_nop 0
    v_fma_f32 v{t0}, v{t0}, -2.0, 1.0
    v_add_f32 v{t0}, 1.0, v{t0}
    v_mul_f32 v{t1}, 0.5, v{g}
    v_mul_f32 v{g}, v{t1}, v{t0}
    """)
    round_bf16(A, g)

def main_addrs(A):
    L = R.LANE; T = R.T
    A(f"""
    v_and_b32 v{T}, 15, v{L}
    v_lshrrev_b32 v{T+1}, 5, v{L}
    v_lshlrev_b32 v{T+2}, 1, v{T+1}
    v_xor_b32 v{T}, v{T}, v{T+2}
    v_lshlrev_b32 v{T}, 4, v{T}
    v_lshlrev_b32 v{T+1}, 9, v{T+1}
    v_and_b32 v{T+2}, 16, v{L}
    v_lshl_add_u32 v{T+1}, v{T+2}, 4, v{T+1}
    v_add_u32 v{T}, v{T}, v{T+1}
    v_add_u32 v{T+1}, 4096, v{T}
    """)
    for p in range(8):
        const = (4*(p & 3)) | (p >> 2)
        src = T if p < 4 else T+1
        if const == 0: A(f"v_mov_b32 v{R.DMA+p}, v{src}")
        else: A(f"v_xor_b32 v{R.DMA+p}, {const << 4}, v{src}")

def read_addrs(A):
    L = R.LANE; T = R.T
    A(f"""
    v_and_b32 v{T}, 15, v{L}
    v_lshlrev_b32 v{T+1}, 1, v{T}
    v_and_b32 v{T+1}, 15, v{T+1}
    v_lshrrev_b32 v{T+2}, 3, v{T}
    v_or_b32 v{T+1}, v{T+1}, v{T+2}
    v_lshrrev_b32 v{T+2}, 4, v{L}
    v_lshlrev_b32 v{T+2}, 1, v{T+2}
    v_xor_b32 v{T+1}, v{T+1}, v{T+2}
    v_lshlrev_b32 v{T+1}, 4, v{T+1}
    v_lshlrev_b32 v{T}, 9, v{T}
    v_add3_u32 v{T}, s{S_LB}, v{T}, v{T+1}
    """)
    for k, m in enumerate((0, 1, 8, 9)):
        if m == 0: A(f"v_mov_b32 v{R.KA+k}, v{T}")
        else: A(f"v_xor_b32 v{R.KA+k}, {m << 4}, v{T}")
    A(f"""
    v_lshrrev_b32 v{T}, 2, v{L}
    v_lshlrev_b32 v{T+1}, 1, v{T}
    v_and_b32 v{T+1}, 15, v{T+1}
    v_lshrrev_b32 v{T+2}, 3, v{T}
    v_or_b32 v{T+1}, v{T+1}, v{T+2}
    v_bfe_u32 v{T+2}, v{L}, 1, 1
    v_xor_b32 v{T+1}, v{T+1}, v{T+2}
    v_lshlrev_b32 v{T+1}, 4, v{T+1}
    v_lshlrev_b32 v{T}, 9, v{T}
    v_and_b32 v{T+2}, 1, v{L}
    v_lshl_add_u32 v{T}, v{T+2}, 3, v{T}
    v_add3_u32 v{T}, s{S_LB}, v{T}, v{T+1}
    v_add_u32 v{T}, 8192, v{T}
    """)
    for k in range(8):
        if k == 0: A(f"v_mov_b32 v{R.VA+k}, v{T}")
        else: A(f"v_xor_b32 v{R.VA+k}, {(2*k) << 4}, v{T}")

def dma_piece(A, p, ldsbase_s, ldsoff, srd_s, soff, throttle=True, W=None):
    W = W or Cfg.W
    if throttle: A(f"s_waitcnt vmcnt({W-1})")
    if p % 4 == 0:
        A(f"s_add_u32 m0, s{ldsbase_s}, {ldsoff + (p//4)*4096}")
        A("s_nop 0")
    A(f"buffer_load_dwordx4 v{R.DMA+p}, s[{srd_s}:{srd_s+3}], s{soff} offen offset:{(p&3)*1024}{' nt' if Cfg.nt else ''} lds")

def iss(A, ldsbase_s, ldsoff, srd_s, soff, throttle=True, rng=range(8)):
    return [(lambda p=p: dma_piece(A, p, ldsbase_s, ldsoff, srd_s, soff, throttle)) for p in rng]

class Pts:
    def __init__(self, fs): self.it = iter(fs) if fs else None
    def __call__(self, n=1):
        for _ in range(n):
            if self.it is not None:
                f = next(self.it, None)
                if f: f()
    def flush(self):
        if self.it is not None:
            for f in self.it: f()

def k_tile(A, issue, pre=None):
    pt = Pts(issue)
    for s in range(8):
        A(f"ds_read_b128 v[{R.KS+4*s}:{R.KS+4*s+3}], v{R.KA+(s&3)} offset:{(s>>2)*256}")
    if pre: pre()
    for s in range(8):
        A(f"s_waitcnt lgkmcnt({7-s})")
        A(f"v_mfma_f32_16x16x32_bf16 v[{R.S}:{R.S+3}], v[{R.KS+4*s}:{R.KS+4*s+3}], v[{R.Q+4*s}:{R.Q+4*s+3}], {'0' if s==0 else f'v[{R.S}:{R.S+3}]'}")
    pt(2)
    for k in range(4): A(f"v_xor_b32 v{R.KA+k}, 0x4000, v{R.KA+k}")
    T = R.T; S = R.S
    A("s_nop 3")
    A(f"v_cvt_pk_bf16_f32 v{T}, v{S}, v{S+1}")
    A(f"v_cvt_pk_bf16_f32 v{T+1}, v{S+2}, v{S+3}")
    A(f"v_lshlrev_b32 v{S}, 16, v{T}")
    A(f"v_and_b32 v{S+1}, 0xffff0000, v{T}")
    A(f"v_lshlrev_b32 v{S+2}, 16, v{T+1}")
    A(f"v_and_b32 v{S+3}, 0xffff0000, v{T+1}")
    for i in range(4): A(f"v_mul_f32 v{S+i}, s{S_SC}, v{S+i}")
    A(f"v_max3_f32 v{R.MN}, v{S}, v{S+1}, v{S+2}")
    A(f"v_max3_f32 v{R.MN}, v{R.MN}, v{S+3}, v{R.M}")
    pt()
    xrow_reduce(A, "v_max_f32", R.MN, T)
    pt()
    A(f"v_sub_f32 v{R.ALPHA}, v{R.M}, v{R.MN}")
    for i in range(4): A(f"v_sub_f32 v{S+i}, v{S+i}, v{R.MN}")
    A(f"v_exp_f32 v{R.ALPHA}, v{R.ALPHA}")
    for i in range(4): A(f"v_exp_f32 v{S+i}, v{S+i}")
    A(f"v_mov_b32 v{R.M}, v{R.MN}")
    pt()
    A(f"v_add_f32 v{T}, v{S}, v{S+1}")
    A(f"v_add_f32 v{T+1}, v{S+2}, v{S+3}")
    A(f"v_cvt_pk_bf16_f32 v{R.P}, v{S}, v{S+1}")
    A(f"v_cvt_pk_bf16_f32 v{R.P+1}, v{S+2}, v{S+3}")
    A(f"v_add_f32 v{T}, v{T}, v{T+1}")
    A(f"v_fma_f32 v{R.L}, v{R.L}, v{R.ALPHA}, v{T}")
    pt.flush()

_lbl = [0]
def newlabel(s):
    _lbl[0] += 1
    return f"L_{s}_{_lbl[0]}"

def v_tile(A, issue):
    def rd(B): A(f"ds_read_b64_tr_b16 v[{R.VS+2*B}:{R.VS+2*B+1}], v{R.VA+(B&7)} offset:{(B>>3)*256}")
    for B in range(8): rd(B)
    lb = newlabel("norescale")
    A(f"v_cmp_neq_f32 vcc, 1.0, v{R.ALPHA}")
    A(f"s_cbranch_vccz {lb}")
    for i in range(64): A(f"v_mul_f32 v{R.O+i}, v{R.O+i}, v{R.ALPHA}")
    A(f"{lb}:")
    A("s_nop 1")
    for B in range(16):
        A(f"s_waitcnt lgkmcnt({7 if B < 8 else 15-B})")
        A(f"v_mfma_f32_16x16x16_bf16 v[{R.O+4*B}:{R.O+4*B+3}], v[{R.VS+2*B}:{R.VS+2*B+1}], v[{R.P}:{R.P+1}], v[{R.O+4*B}:{R.O+4*B+3}]")
        if B < 8: rd(B+8)
    if issue:
        for f in issue: f()
        for k in range(8): A(f"v_xor_b32 v{R.VA+k}, 0x4000, v{R.VA+k}")
    return

def v_toggle(A):
    for k in range(8): A(f"v_xor_b32 v{R.VA+k}, 0x4000, v{R.VA+k}")

def tagcheck(A, acc, regs):
    t1, t2 = R.T+8, R.T+9
    regs = list(regs); i = 0; first = True
    while i < len(regs):
        if first:
            A(f"v_xor_b32 v{acc}, v{regs[i]}, v{R.TAGV}"); i += 1; first = False
        elif i + 1 < len(regs):
            A(f"v_xor_b32 v{t1}, v{regs[i]}, v{R.TAGV}")
            A(f"v_xor_b32 v{t2}, v{regs[i+1]}, v{R.TAGV}")
            A(f"v_or3_b32 v{acc}, v{acc}, v{t1}, v{t2}")
            i += 2
        else:
            A(f"v_xor_b32 v{t1}, v{regs[i]}, v{R.TAGV}")
            A(f"v_or_b32 v{acc}, v{acc}, v{t1}")
            i += 1

def poll_loop(A, name, loads, tagregs, acc, first_wait=None, between=None):
    lp = newlabel(name); done = newlabel(name + "_done"); chk = newlabel(name + "_chk")
    A(f"s_mov_b32 s{S_SPIN}, 0x40000")
    if first_wait is not None:
        loads()
        if between: between()
        A(f"s_waitcnt vmcnt({first_wait})")
        A(f"s_branch {chk}")
    A(f"{lp}:")
    loads()
    A("s_waitcnt vmcnt(0)")
    A(f"{chk}:")
    tagcheck(A, acc, tagregs)
    A(f"v_cmp_ne_u32 vcc, 0, v{acc}")
    A(f"s_cbranch_vccz {done}")
    A(f"s_sub_u32 s{S_SPIN}, s{S_SPIN}, 1")
    A(f"s_cmp_lg_u32 s{S_SPIN}, 0")
    A(f"s_cbranch_scc1 {lp}")
    A(f"{done}:")

def stamp_store(A, n):
    if not Asm.stamps: return
    A(f"s_lshl_b32 s{S_T}, s2, 3"); A(f"s_add_u32 s{S_T}, s{S_T}, s3"); A(f"s_lshl_b32 s{S_T}, s{S_T}, 6"); A(f"s_add_u32 s{S_T}, s{S_T}, {WS_STAMP}")
    A("s_mov_b64 exec, 1")
    A("v_mov_b32 v2, 0")
    for i in range(n):
        A(f"v_mov_b32 v3, s{72+2*i}")
        A(f"buffer_store_dword v3, v2, s[{S_WS}:{S_WS+3}], s{S_T} offen offset:{4*i}")
    A("s_mov_b64 exec, -1")


def lds_arrive(A, off, vaddr, vone):
    A("s_mov_b64 exec, 1")
    A(f"ds_add_u32 v{vaddr}, v{vone} offset:{off}")
    A("s_mov_b64 exec, -1")

def lds_wait(A, off, target, vaddr, vtmp, sleep=0):
    lp = newlabel("ldswait"); done = newlabel("ldsdone")
    A(f"s_mov_b32 s{S_SPIN}, 0x400000")
    A(f"{lp}:")
    A(f"ds_read_b32 v{vtmp}, v{vaddr} offset:{off}")
    A("s_waitcnt lgkmcnt(0)")
    A(f"v_readfirstlane_b32 s{S_T}, v{vtmp}")
    A(f"s_cmp_ge_u32 s{S_T}, {target}")
    A(f"s_cbranch_scc1 {done}")
    if sleep: A(f"s_sleep {sleep}")
    A(f"s_sub_u32 s{S_SPIN}, s{S_SPIN}, 1")
    A(f"s_cmp_lg_u32 s{S_SPIN}, 0")
    A(f"s_cbranch_scc1 {lp}")
    A(f"{done}:")

def gen_kernel(A, name):
    kernel_header(A, name)
    T = R.T; L = R.LANE
    END = f"{name}_done"; AUX = f"{name}_aux"
    A(f"""
    s_cmp_ge_u32 s2, 256
    s_cbranch_scc1 {END}
    STAMP0
    s_load_dwordx16 s[40:55], s[0:1], 0
    s_load_dwordx8 s[56:63], s[0:1], 64
    v_and_b32 v{L}, 63, v0
    v_lshrrev_b32 v2, 6, v0
    s_nop 0
    v_readfirstlane_b32 s3, v2
    s_nop 3
    s_cmp_ge_u32 s3, 4
    s_cbranch_scc1 {AUX}
    """)
    main_addrs(A)
    A(f"""
    s_lshl_b32 s{S_LB}, s3, 15
    s_lshr_b32 s4, s2, 3
    s_lshl_b32 s{S_PB}, s4, 22
    s_and_b32 s5, s2, 7
    s_lshl_b32 s5, s5, 2
    s_add_u32 s{S_WI}, s5, s3
    s_lshl_b32 s5, s{S_WI}, 13
    s_add_u32 s{S_N2}, s{S_PB}, s5
    s_mov_b32 s{S_SC}, {fhex(0.0625*LOG2E)}
    s_mov_b32 s{S_MK}, s{S_LB}
    s_mov_b32 s{S_R}, 2
    s_waitcnt lgkmcnt(0)
    STAMP1
    """)
    srd(A, S_K, P_K, P_K+1, 128 << 20)
    srd(A, S_V, P_V, P_V+1, 128 << 20)
    srd(A, S_WS, P_WS, P_WS+1, WS_SIZE)
    read_addrs(A)
    A(f"v_mov_b32 v{R.M}, {fhex(-1e30)}")
    A(f"v_mov_b32 v{R.L}, 0")
    A(f"""
    v_and_b32 v{T+5}, 15, v{L}
    v_lshlrev_b32 v{T+5}, 9, v{T+5}
    v_lshrrev_b32 v{T+6}, 4, v{L}
    v_lshl_add_u32 v{T+5}, v{T+6}, 5, v{T+5}
    v_add_u32 v{T+5}, {L_QL}, v{T+5}
    v_mov_b32 v{T+7}, {L_CNT}
    """)
    if Cfg.S0 < 16:
        A(f"s_lshr_b32 s4, s2, 3"); A(f"s_lshl_b32 s4, s4, 8"); A(f"s_add_u32 s4, s4, {WS_CNT}"); A(f"v_mov_b32 v{R.CA}, s4")
    for p in range(Cfg.KEARLY): dma_piece(A, p, S_LB, 0, S_K, S_N2, throttle=False)
    A("s_barrier")
    for p in range(Cfg.KEARLY, 8): dma_piece(A, p, S_LB, 0, S_K, S_N2, throttle=False)
    A("STAMP2")
    for i in range(64): A(f"v_mov_b32 v{R.O+i}, 0")
    for i in range(32): A(f"v_mov_b32 v{R.Q+i}, 0")
    thr = Cfg.W0 > 0
    for p in range(8): dma_piece(A, p, S_LB, 8192, S_V, S_N2, throttle=thr, W=Cfg.W0)
    A(f"s_add_u32 s{S_N2}, s{S_N2}, {32*8192}")
    for p in range(8): dma_piece(A, p, S_LB, 16384, S_K, S_N2, throttle=thr, W=Cfg.W0)
    for p in range(8): dma_piece(A, p, S_LB, 24576, S_V, S_N2, throttle=thr, W=Cfg.W0)
    A(f"s_add_u32 s{S_N2}, s{S_N2}, {32*8192}")
    A("STAMP6")
    lds_wait(A, 4, 4, T+7, T+8, sleep=1)
    A("STAMP7")
    A("EXEC 0x0003000300030003")
    for s_ in range(8):
        A(f"ds_read_b128 v[{R.Q+4*s_}:{R.Q+4*s_+3}], v{T+5} offset:{(s_&1)*16 + (s_>>1)*128}")
    A("s_mov_b64 exec, -1")
    A("s_waitcnt lgkmcnt(0)")
    A("STAMP8")
    LOOP = f"{name}_loop"
    A(f"{LOOP}:")
    def pre():
        if Cfg.S0 < 16:
            lb = newlabel("noatom")
            A(f"s_cmp_lt_u32 s{S_R}, {Cfg.S0 - 1}")
            A(f"s_cbranch_scc1 {lb}")
            A(f"v_mov_b32 v{R.IDX}, 1")
            A("s_mov_b64 exec, 1")
            A(f"buffer_atomic_add v{R.IDX}, v{R.CA}, s[{S_WS}:{S_WS+3}], 0 offen sc0 sc1")
            A("s_mov_b64 exec, -1")
            A(f"{lb}:")
    A("s_waitcnt vmcnt(24)")
    k_tile(A, iss(A, S_MK, 0, S_K, S_N2), pre=pre)
    A("s_waitcnt vmcnt(24)")
    v_tile(A, iss(A, S_MK, 8192, S_V, S_N2))
    A(f"s_xor_b32 s{S_MK}, s{S_MK}, 0x4000")
    A(f"s_add_u32 s{S_R}, s{S_R}, 1")
    if Cfg.S0 < 16:
        lb = newlabel("static"); lb2 = newlabel("idx")
        A(f"s_cmp_lt_u32 s{S_R}, {Cfg.S0}")
        A(f"s_cbranch_scc1 {lb}")
        A("s_waitcnt vmcnt(8)")
        A(f"v_readfirstlane_b32 s4, v{R.IDX}")
        A(f"s_nop 0")
        A(f"s_add_u32 s4, s4, {Cfg.S0*32}")
        A(f"s_branch {lb2}")
        A(f"{lb}:")
        A(f"s_lshl_b32 s4, s{S_R}, 5")
        A(f"s_add_u32 s4, s4, s{S_WI}")
        A(f"{lb2}:")
    else:
        A(f"s_lshl_b32 s4, s{S_R}, 5")
        A(f"s_add_u32 s4, s4, s{S_WI}")
    A(f"s_lshl_b32 s5, s4, 13")
    A(f"s_add_u32 s{S_N2}, s{S_PB}, s5")
    A("s_cmp_lt_u32 s4, 512")
    A(f"s_cbranch_scc1 {LOOP}")
    A("s_waitcnt vmcnt(24)")
    k_tile(A, None)
    A("s_waitcnt vmcnt(16)")
    v_tile(A, None)
    v_toggle(A)
    A("s_waitcnt vmcnt(8)")
    k_tile(A, None)
    W0 = R.UG
    A(f"""
    v_and_b32 v{W0}, 15, v{L}
    v_lshlrev_b32 v{W0}, 10, v{W0}
    v_lshrrev_b32 v{W0+1}, 4, v{L}
    v_lshl_add_u32 v{W0}, v{W0+1}, 4, v{W0}
    v_add_u32 v{W0}, s{S_LB}, v{W0}
    v_and_b32 v{W0+2}, 15, v{L}
    v_lshlrev_b32 v{W0+2}, 3, v{W0+2}
    v_add_u32 v{W0+2}, s{S_LB}, v{W0+2}
    """)
    xrow_reduce(A, "v_add_f32", R.L, T)
    A(f"v_mov_b32 v{W0+4}, v{R.M}")
    A(f"v_mov_b32 v{W0+5}, v{R.L}")
    A("s_waitcnt vmcnt(0)")
    A("STAMP9")
    v_tile(A, None)
    A("s_mov_b64 exec, 3")
    A(f"ds_write_b64 v{W0+2}, v[{W0+4}:{W0+5}] offset:2048")
    A("EXEC 0x0003000300030003")
    for B in range(16):
        A(f"ds_write_b128 v{W0}, v[{R.O+4*B}:{R.O+4*B+3}] offset:{B*64}")
    A("s_mov_b64 exec, -1")
    A("s_waitcnt lgkmcnt(0)")
    A("s_barrier")
    A("STAMP10")
    if Asm.stamps:
        A("s_mov_b64 s[94:95], 0"); A("s_mov_b64 s[96:97], 0"); A("s_mov_b64 s[78:79], 0"); A("s_mov_b64 s[80:81], 0"); A("s_mov_b64 s[82:83], 0")
        stamp_store(A, 13)
    A("s_endpgm")

    A(f"{AUX}:")
    A("s_sub_u32 s3, s3, 4")
    A(f"""
    v_lshrrev_b32 v{T+4}, 3, v{L}
    v_and_b32 v{T+5}, 7, v{L}
    v_lshlrev_b32 v{T+5}, 4, v{T+5}
    v_lshl_add_u32 v{T+6}, v{T+4}, 13, v{T+5}
    s_movk_i32 s{S_T}, 3584
    v_mul_lo_u32 v{T+7}, v{T+4}, s{S_T}
    v_add_u32 v{T+7}, v{T+7}, v{T+5}
    v_lshlrev_b32 v{T+3}, 4, v{L}
    s_and_b32 s33, s2, 3
    s_lshr_b32 s34, s2, 2
    s_min_u32 s35, s34, 55
    s_cmp_ge_u32 s35, 28
    s_cselect_b32 s36, 28, 0
    s_cselect_b32 s37, 1, 0
    s_sub_u32 s35, s35, s36
    s_mul_i32 s38, s33, 112
    s_mul_i32 s39, s3, 28
    s_add_u32 s38, s38, s39
    s_lshl_b32 s4, s38, 13
    s_lshl_b32 s5, s34, 7
    s_add_u32 s4, s4, s5
    s_mul_i32 s6, s38, 3584
    s_lshl_b32 s5, s35, 7
    s_add_u32 s6, s6, s5
    s_mul_i32 s7, s3, {28*128}
    s_mul_i32 s39, s3, 896
    v_mov_b32 v44, 0
    v_mov_b32 v45, 0
    v_mov_b32 v46, 0
    v_mov_b32 v47, 0
    s_waitcnt lgkmcnt(0)
    STAMP1
    s_load_dword s{S_EP}, s[{P_WS}:{P_WS+1}], {WS_EPOCH}
    """)
    srd(A, S_WS, P_WS, P_WS+1, WS_SIZE)
    srd(A, S_X, P_X, P_X+1, 3584)
    srd(A, S_WA, P_WQ, P_WQ+1, 448*4096*2)
    if Cfg.S0 < 16:
        lb = newlabel("noinit")
        A(f"""
        s_and_b32 s36, s2, 31
        s_cmp_lt_u32 s36, 4
        s_cbranch_scc0 {lb}
        s_cmp_eq_u32 s3, 0
        s_cbranch_scc0 {lb}
        s_lshl_b32 s36, s36, 3
        s_lshr_b32 s38, s2, 5
        s_add_u32 s36, s36, s38
        s_lshl_b32 s36, s36, 8
        s_add_u32 s36, s36, {WS_CNT}
        s_mov_b64 exec, 1
        buffer_store_dword v44, v44, s[{S_WS}:{S_WS+3}], s36 offen sc1
        s_mov_b64 exec, -1
        {lb}:
        """)
    A("EXEC 0x00ffffffffffffff")
    A(f"buffer_load_dwordx4 v[44:47], v{T+3}, s[{S_X}:{S_X+3}], s39 offen {Cfg.WL}")
    A("s_mov_b64 exec, -1")
    for j in range(4):
        A(f"s_add_u32 m0, s7, {L_STG + j*1024}")
        A("EXEC 0xffffffff" if j == 3 else "s_nop 0")
        A(f"buffer_load_dwordx4 v{T+6}, s[{S_WA}:{S_WA+3}], s4 offen {Cfg.WL} lds")
        if j < 3: A(f"s_add_u32 s4, s4, {8*8192}")
    A("s_mov_b64 exec, -1")
    A(f"s_cmp_eq_u32 s37, 0")
    A(f"s_cselect_b32 s{S_WB}, s{P_G}, s{P_U}")
    A(f"s_cselect_b32 s{S_WB+1}, s{P_G+1}, s{P_U+1}")
    A(f"s_and_b32 s{S_WB+1}, s{S_WB+1}, 0xffff")
    A(f"s_mov_b32 s{S_WB+2}, {448*1792*2}")
    A(f"s_mov_b32 s{S_WB+3}, 0x20000")
    for j in range(4):
        A(f"s_add_u32 m0, s7, {L_STG + 14336 + j*1024}")
        A("EXEC 0xffffffff" if j == 3 else "s_nop 0")
        A(f"buffer_load_dwordx4 v{T+7}, s[{S_WB}:{S_WB+3}], s6 offen {Cfg.WL} lds")
        if j < 3: A(f"s_add_u32 s6, s6, {8*3584}")
    A("s_mov_b64 exec, -1")
    A("STAMP2")
    CN, ONE = R.CA, R.CA+1
    A(f"v_mov_b32 v{CN}, {L_CNT}")
    A(f"v_mov_b32 v{ONE}, 1")
    A(f"v_mov_b32 v{T}, 0"); A(f"v_mov_b32 v{T+1}, 0")
    lb = newlabel("nozero")
    A("s_cmp_eq_u32 s3, 0")
    A(f"s_cbranch_scc0 {lb}")
    A("s_mov_b64 exec, 1")
    A(f"ds_write_b64 v{CN}, v[{T}:{T+1}]")
    A(f"ds_write_b64 v{CN}, v[{T}:{T+1}] offset:8")
    A("s_mov_b64 exec, -1")
    A(f"{lb}:")
    AA, BA, QP, GP, XW = R.UG+24, R.UG+25, R.UG+26, R.UG+27, R.UG+28
    A(f"""
    v_lshrrev_b32 v{T}, 2, v{L}
    v_lshlrev_b32 v{T}, 7, v{T}
    v_and_b32 v{T+1}, 3, v{L}
    v_lshl_add_u32 v{T}, v{T+1}, 3, v{T}
    s_lshl_b32 s4, s3, 5
    s_add_u32 s4, s4, {L_STG}
    v_add_u32 v{AA}, s4, v{T}
    v_mul_u32_u24 v{T+1}, 224, v{T+1}
    v_lshrrev_b32 v{T+2}, 4, v{L}
    v_lshl_add_u32 v{T+1}, v{T+2}, 3, v{T+1}
    v_add_u32 v{BA}, {L_XN}, v{T+1}
    v_and_b32 v{T+4}, 15, v{L}
    v_lshlrev_b32 v{T+2}, 5, v{T+2}
    v_lshl_add_u32 v{QP}, v{T+4}, 15, v{T+2}
    s_movk_i32 s4, 14336
    v_mul_lo_u32 v{GP}, v{T+4}, s4
    v_add_u32 v{GP}, v{GP}, v{T+2}
    s_mul_i32 s4, s3, 224
    s_mul_i32 s5, s33, 224
    s_sub_u32 s4, s4, s5
    s_add_u32 s4, s4, {L_XN}
    v_add_u32 v{XW}, s4, v{T+3}
    s_mul_i32 s38, s33, 14
    s_lshl_b64 s[92:93], 0x3fff, s38
    s_lshl_b32 s5, s3, 7
    s_lshl_b32 s4, s34, 9
    s_add_u32 s4, s4, s5
    s_lshl_b32 s39, s33, 17
    s_add_u32 s4, s4, s39
    s_add_u32 s4, s4, {WS_Q2}
    s_lshl_b32 s36, s35, 9
    s_add_u32 s36, s36, s5
    s_mul_i32 s5, s37, {16*1792*8}
    s_add_u32 s36, s36, s5
    s_mul_i32 s5, s33, {4*1792*8}
    s_add_u32 s36, s36, s5
    s_add_u32 s36, s36, {WS_GU}
    s_mov_b32 s5, 0x000f000f
    s_waitcnt lgkmcnt(0)
    s_barrier
    """)
    G = 92; F = 48
    A(f"""
    s_mul_i32 s{S_TAG}, s{S_EP}, 0x9E3779B1
    s_add_u32 s{S_TAG}, s{S_TAG}, 0x7F4A7C15
    v_mov_b32 v{R.TAGV}, s{S_TAG}
    v_mov_b32 v{G+1}, s{S_TAG}
    v_mov_b32 v{G+3}, s{S_TAG}
    v_mov_b32 v{G+5}, s{S_TAG}
    v_mov_b32 v{G+7}, s{S_TAG}
    s_waitcnt vmcnt(8)
    """)
    for i in range(4):
        A(f"v_lshlrev_b32 v{F+2*i}, 16, v{44+i}")
        A(f"v_and_b32 v{F+2*i+1}, 0xffff0000, v{44+i}")
    S0 = T; Q0 = T+4; D0 = T+8
    A(f"v_pk_add_f32 v[{S0}:{S0+1}], v[{F}:{F+1}], v[{F+2}:{F+3}]")
    A(f"v_pk_add_f32 v[{Q0}:{Q0+1}], v[{F+4}:{F+5}], v[{F+6}:{F+7}]")
    A(f"v_pk_add_f32 v[{S0}:{S0+1}], v[{S0}:{S0+1}], v[{Q0}:{Q0+1}]")
    A(f"v_add_f32 v{S0}, v{S0}, v{S0+1}")
    wave_reduce(A, "v_add_f32", S0, T+2)
    A(f"v_mul_f32 v{S0}, {fhex(1.0/448)}, v{S0}")
    A(f"v_mov_b32 v{Q0}, 0"); A(f"v_mov_b32 v{Q0+1}, 0")
    A(f"v_mov_b32 v{S0+1}, v{S0}")
    A("EXEC 0x00ffffffffffffff")
    for i in range(4):
        A(f"v_pk_add_f32 v[{D0}:{D0+1}], v[{F+2*i}:{F+2*i+1}], v[{S0}:{S0+1}] neg_lo:[0,1] neg_hi:[0,1]")
        A(f"v_pk_fma_f32 v[{Q0}:{Q0+1}], v[{D0}:{D0+1}], v[{D0}:{D0+1}], v[{Q0}:{Q0+1}]")
    A("s_mov_b64 exec, -1")
    A(f"v_add_f32 v{Q0}, v{Q0}, v{Q0+1}")
    wave_reduce(A, "v_add_f32", Q0, T+2)
    A(f"v_mul_f32 v{Q0}, {fhex(1.0/448)}, v{Q0}")
    round_bf16(A, Q0)
    A(f"v_add_f32 v{Q0}, {fhex(1e-5)}, v{Q0}")
    round_bf16(A, Q0)
    A(f"v_sqrt_f32 v{Q0}, v{Q0}")
    round_bf16(A, S0)
    round_bf16(A, Q0)
    A(f"v_mov_b32 v{S0+1}, v{S0}")
    A(f"v_rcp_f32 v{Q0}, v{Q0}")
    for i in range(4):
        A(f"v_pk_add_f32 v[{F+2*i}:{F+2*i+1}], v[{F+2*i}:{F+2*i+1}], v[{S0}:{S0+1}] neg_lo:[0,1] neg_hi:[0,1]")
    A(f"v_mov_b32 v{Q0+1}, v{Q0}")
    for i in range(4):
        A(f"v_cvt_pk_bf16_f32 v{44+i}, v{F+2*i}, v{F+2*i+1}")
    for i in range(4):
        A(f"v_lshlrev_b32 v{F+2*i}, 16, v{44+i}")
        A(f"v_and_b32 v{F+2*i+1}, 0xffff0000, v{44+i}")
    for i in range(4):
        A(f"v_pk_mul_f32 v[{F+2*i}:{F+2*i+1}], v[{F+2*i}:{F+2*i+1}], v[{Q0}:{Q0+1}]")
    for i in range(4):
        A(f"v_cvt_pk_bf16_f32 v{44+i}, v{F+2*i}, v{F+2*i+1}")
    A(f"""
    s_mov_b64 exec, s[92:93]
    ds_write_b128 v{XW}, v[44:47]
    s_mov_b64 exec, -1
    STAMP3
    s_waitcnt vmcnt({4 if Cfg.SPLITFFN else 0}) lgkmcnt(0)
    """)
    lds_arrive(A, 0, CN, ONE)
    lds_wait(A, 0, 4, CN, T+8)
    A("STAMP4")
    XV = 76; AW = 108; AW2 = 128; C1 = 40; C2 = 124
    for s_ in range(7):
        A(f"ds_read_b64 v[{XV+2*s_}:{XV+2*s_+1}], v{BA} offset:{s_*32}")
        A(f"ds_read_b64_tr_b16 v[{AW+2*s_}:{AW+2*s_+1}], v{AA} offset:{s_*2048}")
    for s_ in range(7):
        A(f"s_waitcnt lgkmcnt({12-2*s_})")
        A(f"v_mfma_f32_16x16x16_bf16 v[{C1}:{C1+3}], v[{AW+2*s_}:{AW+2*s_+1}], v[{XV+2*s_}:{XV+2*s_+1}], {'0' if s_==0 else f'v[{C1}:{C1+3}]'}")
    def publish(C, vaddr, soff):
        A(f"s_mov_b32 exec_lo, s5"); A(f"s_mov_b32 exec_hi, s5")
        A("s_nop 5")
        A(f"v_mov_b32 v{G}, v{C}"); A(f"v_mov_b32 v{G+2}, v{C+1}"); A(f"v_mov_b32 v{G+4}, v{C+2}"); A(f"v_mov_b32 v{G+6}, v{C+3}")
        A(f"buffer_store_dwordx4 v[{G}:{G+3}], v{vaddr}, s[{S_WS}:{S_WS+3}], s{soff} offen {Cfg.ST}")
        A(f"buffer_store_dwordx4 v[{G+4}:{G+7}], v{vaddr}, s[{S_WS}:{S_WS+3}], s{soff} offen offset:16 {Cfg.ST}")
        A("s_mov_b64 exec, -1")
    if not Cfg.SPLITFFN:
        for s_ in range(7):
            A(f"ds_read_b64_tr_b16 v[{AW2+2*s_}:{AW2+2*s_+1}], v{AA} offset:{14336 + s_*2048}")
    publish(C1, QP, 4)
    A("STAMP5")
    if Cfg.SPLITFFN:
        A("s_waitcnt vmcnt(2)")
        lds_arrive(A, 8, CN, ONE)
        lds_wait(A, 8, 4, CN, T+8)
        for s_ in range(7):
            A(f"ds_read_b64_tr_b16 v[{AW2+2*s_}:{AW2+2*s_+1}], v{AA} offset:{14336 + s_*2048}")
    for s_ in range(7):
        A(f"s_waitcnt lgkmcnt({6-s_})" if not Asm.stamps else "s_waitcnt lgkmcnt(0)")
        A(f"v_mfma_f32_16x16x16_bf16 v[{C2}:{C2+3}], v[{AW2+2*s_}:{AW2+2*s_+1}], v[{XV+2*s_}:{XV+2*s_+1}], {'0' if s_==0 else f'v[{C2}:{C2+3}]'}")
    lb = newlabel("noffn")
    A("s_cmp_ge_u32 s2, 224")
    A(f"s_cbranch_scc1 {lb}")
    publish(C2, GP, 36)
    A(f"{lb}:")
    A("STAMP6")
    QG = 44
    A(f"""
    s_lshr_b32 s4, s2, 6
    s_bfe_u32 s5, s2, 0x30003
    s_lshl_b32 s6, s4, 15
    s_lshl_b32 s7, s5, 12
    s_add_u32 s6, s6, s7
    s_lshl_b32 s7, s3, 10
    s_add_u32 s6, s6, s7
    s_add_u32 s6, s6, {WS_Q2}
    v_lshlrev_b32 v{T}, 4, v{L}
    v_lshlrev_b32 v{T+2}, 2, v{L}
    s_lshl_b32 s4, s3, 8
    s_add_u32 s4, s4, {L_QL}
    v_add_u32 v{T+2}, s4, v{T+2}
    """)
    def qloads():
        for kq in range(4):
            A(f"s_add_u32 s38, s6, {kq*131072}")
            A(f"buffer_load_dwordx4 v[{QG+4*kq}:{QG+4*kq+3}], v{T}, s[{S_WS}:{S_WS+3}], s38 offen {Cfg.LD}")
    poll_loop(A, "pollq", qloads, [QG+4*k+1 for k in range(4)] + [QG+4*k+3 for k in range(4)], T+1)
    A(f"""
    v_add_f32 v{QG}, v{QG}, v{QG+4}
    v_add_f32 v{QG+8}, v{QG+8}, v{QG+12}
    v_add_f32 v{QG+2}, v{QG+2}, v{QG+6}
    v_add_f32 v{QG+10}, v{QG+10}, v{QG+14}
    v_add_f32 v{QG}, v{QG}, v{QG+8}
    v_add_f32 v{QG+2}, v{QG+2}, v{QG+10}
    v_cvt_pk_bf16_f32 v{QG}, v{QG}, v{QG+2}
    ds_write_b32 v{T+2}, v{QG}
    s_waitcnt lgkmcnt(0)
    """)
    lds_arrive(A, 4, CN, ONE)
    A("STAMP7")
    UG = R.UG
    srd(A, S_WA, P_WO, P_WO+1, 4096*448*2)
    srd(A, S_WB, P_WD, P_WD+1, 1792*448*2)
    A(f"""
    v_lshrrev_b32 v{T+3}, 3, v{L}
    s_movk_i32 s4, 896
    v_mul_lo_u32 v{T+3}, v{T+3}, s4
    v_and_b32 v{T+4}, 7, v{L}
    v_lshl_add_u32 v{T+3}, v{T+4}, 4, v{T+3}
    s_and_b32 s4, s2, 7
    s_lshr_b32 s5, s2, 6
    s_bfe_u32 s6, s2, 0x30003
    s_min_u32 s6, s6, 6
    s_lshl_b32 s7, s4, 9
    s_lshl_b32 s38, s5, 7
    s_add_u32 s7, s7, s38
    s_lshl_b32 s38, s3, 5
    s_add_u32 s7, s7, s38
    s_mul_i32 s7, s7, 896
    s_lshl_b32 s6, s6, 7
    s_add_u32 s7, s7, s6
    s_lshl_b32 s38, s3, 12
    """)
    lds_wait(A, 4, 4, CN, T+8, sleep=1)
    for j in range(4):
        A(f"s_add_u32 m0, s38, {L_STG + j*1024}")
        A("s_nop 0")
        A(f"buffer_load_dwordx4 v{T+3}, s[{S_WA}:{S_WA+3}], s7 offen {Cfg.WL} lds")
        if j < 3: A(f"s_add_u32 s7, s7, {8*896}")
    A(f"""
    s_lshl_b32 s4, s4, 2
    s_add_u32 s4, s4, s5
    s_mul_i32 s33, s4, {56*8}
    s_mul_i32 s4, s4, 56
    s_lshl_b32 s5, s3, 4
    s_add_u32 s4, s4, s5
    s_mul_i32 s4, s4, 896
    s_add_u32 s4, s4, s6
    s_lshl_b32 s38, s3, 11
    """)
    for j in range(2):
        A(f"s_add_u32 m0, s38, {L_STG + 16384 + j*1024}")
        A("s_nop 0")
        A(f"buffer_load_dwordx4 v{T+3}, s[{S_WB}:{S_WB+3}], s4 offen {Cfg.WL} lds")
        if j < 1: A(f"s_add_u32 s4, s4, {8*896}")
    A(f"""
    s_mul_i32 s38, s3, {1792*8}
    s_add_u32 s33, s33, s38
    s_add_u32 s33, s33, {WS_GU}
    v_lshlrev_b32 v{T}, 4, v{L}
    """)
    for i in range(8):
        A(f"v_mov_b32 v{UG+4*i+1}, v{R.TAGV}"); A(f"v_mov_b32 v{UG+4*i+3}, v{R.TAGV}")
        A(f"v_mov_b32 v{UG+4*i}, 0"); A(f"v_mov_b32 v{UG+4*i+2}, 0")
    def guloads():
        A("EXEC 0x0fffffff")
        for i in range(8):
            A(f"s_add_u32 s38, s33, {(i>>2)*16*1792*8 + (i&3)*4*1792*8}")
            A(f"buffer_load_dwordx4 v[{UG+4*i}:{UG+4*i+3}], v{T}, s[{S_WS}:{S_WS+3}], s38 offen {Cfg.LD}")
        A("s_mov_b64 exec, -1")
    poll_loop(A, "pollgu", guloads, [UG+4*i+1 for i in range(8)] + [UG+4*i+3 for i in range(8)], T+1)
    for base, off in ((UG, 0), (UG, 2), (UG+16, 0), (UG+16, 2)):
        A(f"v_add_f32 v{base+off}, v{base+off}, v{base+4+off}")
        A(f"v_add_f32 v{base+8+off}, v{base+8+off}, v{base+12+off}")
        A(f"v_add_f32 v{base+off}, v{base+off}, v{base+8+off}")
        round_bf16(A, base+off)
    gelu(A, UG, T+4, T+5)
    gelu(A, UG+2, T+4, T+5)
    A(f"""
    v_mul_f32 v{UG}, v{UG}, v{UG+16}
    v_mul_f32 v{UG+2}, v{UG+2}, v{UG+18}
    v_cvt_pk_bf16_f32 v{UG}, v{UG}, v{UG+2}
    s_mul_i32 s4, s3, 384
    s_add_u32 s4, s4, {L_OB+256}
    v_lshlrev_b32 v{T+1}, 2, v{L}
    v_add_u32 v{T+2}, s4, v{T+1}
    EXEC 0xffffffff
    ds_write_b32 v{T+2}, v{UG}
    s_mov_b64 exec, -1
    """)
    A("STAMP8")
    CA0 = 140
    A(f"""
    v_subrev_u32 v{CA0+9}, 256, v0
    v_lshrrev_b32 v{CA0}, 7, v{CA0+9}
    v_and_b32 v{CA0+1}, 127, v{CA0+9}
    v_lshlrev_b32 v{CA0+2}, 10, v{CA0}
    v_lshl_add_u32 v{CA0+2}, v{CA0+1}, 3, v{CA0+2}
    v_lshlrev_b32 v{CA0+3}, 3, v{CA0}
    v_add_u32 v{CA0+4}, 65536, v{CA0+2}
    v_add_u32 v{CA0+5}, 65536, v{CA0+3}
    v_lshlrev_b32 v{CA0+6}, 4, v{CA0+9}
    v_lshlrev_b32 v{CA0+7}, 4, v{CA0}
    s_lshl_b32 s98, s2, 12
    s_add_u32 s98, s98, {WS_PART}
    s_lshl_b32 s99, s2, 5
    s_add_u32 s99, s99, {WS_ML}
    v_mov_b32 v65, v{R.TAGV}
    v_mov_b32 v67, v{R.TAGV}
    v_mov_b32 v69, v{R.TAGV}
    v_mov_b32 v71, v{R.TAGV}
    """)
    X0 = 152
    for i in range(8): A(f"v_mov_b32 v{X0+i}, 0")
    ST3 = f"{name}_pre3"; PREDONE = f"{name}_predone"
    A(f"""
    s_bfe_u32 s6, s2, 0x30003
    s_and_b32 s4, s2, 7
    s_lshr_b32 s5, s2, 6
    s_cmp_eq_u32 s6, 7
    s_cbranch_scc1 {ST3}
    """)
    A(f"""
    s_lshl_b32 s7, s3, 3
    s_add_u32 s7, s7, s4
    s_lshl_b32 s38, s7, 15
    s_lshl_b32 s39, s5, 10
    s_add_u32 s38, s38, s39
    s_add_u32 s38, s38, {WS_PART}
    s_lshl_b32 s39, s7, 8
    s_lshr_b32 s33, s5, 1
    s_lshl_b32 s33, s33, 4
    s_add_u32 s39, s39, s33
    s_add_u32 s39, s39, {WS_ML}
    v_lshlrev_b32 v{X0}, 4, v{L}
    v_and_b32 v{X0+1}, 7, v{L}
    v_lshlrev_b32 v{X0+1}, 5, v{X0+1}
    v_lshrrev_b32 v{X0+2}, 2, v{L}
    v_lshlrev_b32 v{X0+2}, 7, v{X0+2}
    v_and_b32 v{X0+3}, 3, v{L}
    v_lshl_add_u32 v{X0+2}, v{X0+3}, 3, v{X0+2}
    s_lshl_b32 s7, s3, 5
    s_add_u32 s7, s7, {L_STG}
    v_add_u32 v{X0+2}, s7, v{X0+2}
    v_mul_u32_u24 v{X0+3}, 384, v{X0+3}
    v_lshrrev_b32 v{X0+4}, 4, v{L}
    v_lshl_add_u32 v{X0+3}, v{X0+4}, 3, v{X0+3}
    v_add_u32 v{X0+3}, {L_OB}, v{X0+3}
    v_and_b32 v{X0+5}, 15, v{L}
    s_movk_i32 s7, 3584
    v_mul_lo_u32 v{X0+5}, v{X0+5}, s7
    v_lshl_add_u32 v{X0+5}, v{X0+4}, 5, v{X0+5}
    s_lshl_b32 s36, s4, 2
    s_add_u32 s36, s36, s5
    s_mul_i32 s36, s36, {4*448*8}
    s_lshl_b32 s7, s6, 9
    s_add_u32 s36, s36, s7
    s_lshl_b32 s7, s3, 7
    s_add_u32 s36, s36, s7
    s_add_u32 s36, s36, {WS_OUT2}
    s_mul_i32 s7, s3, 384
    s_add_u32 s7, s7, {L_OB}
    v_lshlrev_b32 v{X0+6}, 2, v{L}
    v_add_u32 v{X0+6}, s7, v{X0+6}
    s_mov_b32 s5, 0x000f000f
    s_branch {PREDONE}
    """)
    A(f"{ST3}:")
    A(f"""
    v_lshrrev_b32 v{X0}, 3, v{L}
    s_mov_b32 s7, {4*448*8}
    v_mul_lo_u32 v{X0}, v{X0}, s7
    v_and_b32 v{X0+1}, 7, v{L}
    v_lshl_add_u32 v{X0}, v{X0+1}, 4, v{X0}
    s_mul_i32 s37, s5, {448*8}
    s_lshl_b32 s7, s4, 9
    s_add_u32 s37, s37, s7
    s_lshl_b32 s7, s3, 7
    s_add_u32 s37, s37, s7
    s_add_u32 s37, s37, {WS_OUT2}
    s_mul_i32 s38, s5, 896
    s_lshl_b32 s7, s4, 7
    s_add_u32 s38, s38, s7
    s_lshl_b32 s7, s3, 5
    s_add_u32 s38, s38, s7
    v_lshlrev_b32 v{X0+2}, 2, v{X0+1}
    """)
    srd(A, S_X, P_X, P_X+1, 3584)
    srd(A, S_WA, P_OUT, P_OUT+1, 3584)
    A(f"buffer_load_dword v{X0+3}, v{X0+2}, s[{S_X}:{S_X+3}], s38 offen {Cfg.WL}")
    A(f"{PREDONE}:")
    A("s_waitcnt vmcnt(0) lgkmcnt(0)")
    A("s_barrier")
    A("STAMP9")
    for w in range(4):
        b = CA0+3 if w < 2 else CA0+5
        A(f"ds_read_b64 v[{52+2*w}:{53+2*w}], v{b} offset:{(w&1)*32768+2048}")
    for w in range(4):
        a = CA0+2 if w < 2 else CA0+4
        A(f"ds_read_b64 v[{44+2*w}:{45+2*w}], v{a} offset:{(w&1)*32768}")
    A("s_waitcnt lgkmcnt(4)")
    A("v_max3_f32 v60, v52, v54, v56")
    A("v_max_f32 v60, v60, v58")
    for w in range(4): A(f"v_sub_f32 v{52+2*w}, v{52+2*w}, v60")
    for w in range(4): A(f"v_exp_f32 v{52+2*w}, v{52+2*w}")
    A("v_mov_b32 v68, v60")
    A("s_waitcnt lgkmcnt(0)")
    A("v_mul_f32 v64, v44, v52"); A("v_mul_f32 v66, v45, v52"); A("v_mul_f32 v70, v53, v52")
    for w in range(1, 4):
        A(f"v_fmac_f32 v64, v{44+2*w}, v{52+2*w}")
        A(f"v_fmac_f32 v66, v{45+2*w}, v{52+2*w}")
        A(f"v_fmac_f32 v70, v{53+2*w}, v{52+2*w}")
    A(f"""
    buffer_store_dwordx4 v[64:67], v{CA0+6}, s[{S_WS}:{S_WS+3}], s98 offen {Cfg.ST}
    v_cmp_eq_u32 vcc, 0, v{CA0+1}
    s_and_saveexec_b64 s[92:93], vcc
    s_cbranch_execz {name}_noml
    buffer_store_dwordx4 v[68:71], v{CA0+7}, s[{S_WS}:{S_WS+3}], s99 offen {Cfg.ST}
    """)
    A(f"{name}_noml:")
    A("s_mov_b64 exec, -1")
    A("STAMP10")
    A(f"""
    s_cmp_eq_u32 s6, 7
    s_cbranch_scc1 {name}_stage3
    """)
    OG = 44; MG = 76; AW2 = 80
    def oloads():
        A(f"buffer_load_dwordx4 v[{MG}:{MG+3}], v{X0+1}, s[{S_WS}:{S_WS+3}], s39 offen {Cfg.LD}")
        for s_ in range(8):
            A(f"s_add_u32 s33, s38, {s_*4096}")
            A(f"buffer_load_dwordx4 v[{OG+4*s_}:{OG+4*s_+3}], v{X0}, s[{S_WS}:{S_WS+3}], s33 offen {Cfg.LD}")
    def pre2():
        for s_ in range(12):
            A(f"ds_read_b64_tr_b16 v[{AW2+2*s_}:{AW2+2*s_+1}], v{X0+2} offset:{s_*2048}")
    poll_loop(A, "poll2", oloads, [MG+1, MG+3] + [OG+4*s_+1 for s_ in range(8)] + [OG+4*s_+3 for s_ in range(8)], T+1, first_wait=0, between=pre2)
    A("STAMP11")
    A(f"v_mov_b32 v{T+3}, v{MG}")
    for r in (1, 2, 4):
        A("s_nop 1")
        A(f"v_max_f32_dpp v{T+3}, v{T+3}, v{T+3} row_ror:{r} row_mask:0xf bank_mask:0xf")
    A(f"v_sub_f32 v{T+4}, v{MG}, v{T+3}")
    A(f"v_exp_f32 v{T+4}, v{T+4}")
    A("s_nop 0")
    A(f"v_mul_f32 v{T+7}, v{T+4}, v{MG+2}")
    for r in (1, 2, 4):
        A("s_nop 1")
        A(f"v_add_f32_dpp v{T+7}, v{T+7}, v{T+7} row_ror:{r} row_mask:0xf bank_mask:0xf")
    A(f"v_rcp_f32 v{T+7}, v{T+7}")
    A("s_nop 0")
    A(f"v_mul_f32 v{T+4}, v{T+4}, v{T+7}")
    A("s_nop 0")
    for s_ in range(8):
        A(f"v_readlane_b32 s{40+s_}, v{T+4}, {s_}")
    A("s_nop 1")
    A(f"v_mul_f32 v{T+6}, s40, v{OG}")
    A(f"v_mul_f32 v{T+7}, s40, v{OG+2}")
    for s_ in range(1, 8):
        A(f"v_fmac_f32 v{T+6}, s{40+s_}, v{OG+4*s_}")
        A(f"v_fmac_f32 v{T+7}, s{40+s_}, v{OG+4*s_+2}")
    A(f"""
    v_cvt_pk_bf16_f32 v{T+6}, v{T+6}, v{T+7}
    ds_write_b32 v{X0+6}, v{T+6}
    s_waitcnt lgkmcnt(0)
    s_barrier
    """)
    for s_ in range(12):
        A(f"ds_read_b64 v[{104+2*s_}:{105+2*s_}], v{X0+3} offset:{s_*32}")
    G2 = 132
    A(f"v_mov_b32 v{G2+1}, v{R.TAGV}"); A(f"v_mov_b32 v{G2+3}, v{R.TAGV}"); A(f"v_mov_b32 v{G2+5}, v{R.TAGV}"); A(f"v_mov_b32 v{G2+7}, v{R.TAGV}")
    for s_ in range(12):
        A(f"s_waitcnt lgkmcnt({11-s_})")
        acc = 40 if s_ % 2 == 0 else 128
        A(f"v_mfma_f32_16x16x16_bf16 v[{acc}:{acc+3}], v[{AW2+2*s_}:{AW2+2*s_+1}], v[{104+2*s_}:{105+2*s_}], {'0' if s_<2 else f'v[{acc}:{acc+3}]'}")
    A(f"s_mov_b32 exec_lo, s5"); A(f"s_mov_b32 exec_hi, s5")
    A("s_nop 5")
    for i in range(4): A(f"v_add_f32 v{G2+2*i}, v{40+i}, v{128+i}")
    A(f"buffer_store_dwordx4 v[{G2}:{G2+3}], v{X0+5}, s[{S_WS}:{S_WS+3}], s36 offen {Cfg.ST}")
    A(f"buffer_store_dwordx4 v[{G2+4}:{G2+7}], v{X0+5}, s[{S_WS}:{S_WS+3}], s36 offen offset:16 {Cfg.ST}")
    A("s_mov_b64 exec, -1")
    A("STAMP12")
    if Asm.stamps: A("s_add_u32 s3, s3, 4")
    stamp_store(A, 13)
    A("s_endpgm")
    A(f"{name}_stage3:")
    A(f"""
    s_cmp_eq_u32 s4, 7
    s_cbranch_scc1 {name}_fin
    """)
    IG = 44
    def iloads():
        for i in range(4):
            A(f"s_add_u32 s33, s37, {i*8*4*448*8}")
            A(f"buffer_load_dwordx4 v[{IG+4*i}:{IG+4*i+3}], v{X0}, s[{S_WS}:{S_WS+3}], s33 offen {Cfg.LD}")
    poll_loop(A, "poll3", iloads, [IG+4*i+1 for i in range(4)] + [IG+4*i+3 for i in range(4)], T+4)
    A("STAMP11")
    for off in (0, 2):
        A(f"v_add_f32 v{IG+off}, v{IG+off}, v{IG+4+off}")
        A(f"v_add_f32 v{IG+8+off}, v{IG+8+off}, v{IG+12+off}")
    for off in (0, 2):
        A(f"v_add_f32 v{IG+off}, v{IG+off}, v{IG+8+off}")
    A("s_nop 0")
    for off in (0, 2):
        A(f"v_add_f32_dpp v{IG+off}, v{IG+off}, v{IG+off} row_ror:8 row_mask:0xf bank_mask:0xf")
    a, b, ta, tb = IG, IG+2, T+5, T+6
    A(f"v_mov_b32 v{ta}, v{a}"); A(f"v_mov_b32 v{tb}, v{b}"); A("s_nop 0")
    A(f"v_permlane16_swap_b32 v{ta}, v{a}"); A(f"v_permlane16_swap_b32 v{tb}, v{b}")
    A(f"v_add_f32 v{a}, v{a}, v{ta}"); A(f"v_add_f32 v{b}, v{b}, v{tb}")
    A(f"v_mov_b32 v{ta}, v{a}"); A(f"v_mov_b32 v{tb}, v{b}"); A("s_nop 0")
    A(f"v_permlane32_swap_b32 v{ta}, v{a}"); A(f"v_permlane32_swap_b32 v{tb}, v{b}")
    A(f"v_add_f32 v{a}, v{a}, v{ta}"); A(f"v_add_f32 v{b}, v{b}, v{tb}")
    A(f"""
    v_lshlrev_b32 v{T+4}, 16, v{X0+3}
    v_and_b32 v{T+5}, 0xffff0000, v{X0+3}
    v_add_f32 v{IG}, v{IG}, v{T+4}
    v_add_f32 v{IG+2}, v{IG+2}, v{T+5}
    v_cvt_pk_bf16_f32 v{IG}, v{IG}, v{IG+2}
    s_mov_b64 exec, 0xff
    buffer_store_dword v{IG}, v{X0+2}, s[{S_WA}:{S_WA+3}], s38 offen
    s_mov_b64 exec, -1
    s_cmp_eq_u32 s2, 56
    s_cbranch_scc0 {name}_fin
    s_cmp_eq_u32 s3, 0
    s_cbranch_scc0 {name}_fin
    v_mov_b32 v{T}, {WS_EPOCH}
    s_mov_b64 exec, 1
    buffer_store_dword v{R.TAGV}, v{T}, s[{S_WS}:{S_WS+3}], 0 offen sc1
    s_mov_b64 exec, -1
    """)
    A(f"{name}_fin:")
    A("STAMP12")
    if Asm.stamps: A("s_add_u32 s3, s3, 4")
    stamp_store(A, 13)
    A(f"{END}:")
    A("s_endpgm")
    return R.NV, 102

def gen(W=8, nt=True, stamps=False, S0=16, SPLITFFN=True, W0=8, KEARLY=0, WL='nt', LD='sc1', ST='sc1'):
    Cfg.W0 = W0; Cfg.KEARLY = KEARLY
    Cfg.WL = WL; Cfg.LD = LD; Cfg.ST = ST
    Asm.stamps = stamps
    Cfg.W = W; Cfg.nt = nt; Cfg.S0 = S0; Cfg.SPLITFFN = SPLITFFN
    _lbl[0] = 0
    name = KN + "_kernel"
    body = Asm()
    nv, ns = gen_kernel(body, name)
    out = [f"; @launch grid=(256,1,1) block=(512,1,1) lds={LDS_BYTES}",
           '.amdgcn_target "amdgcn-amd-amdhsa--gfx950"', ".text", body.text(), '.section .rodata,"a"', kernel_desc(name, nv, ns)]
    return "\n".join(out) + "\n"

if __name__ == "__main__":
    import argparse
    ap = argparse.ArgumentParser()
    ap.add_argument("out"); ap.add_argument("--stamps", action="store_true"); ap.add_argument("--W", type=int, default=8); ap.add_argument("--S0", type=int, default=16)
    ap.add_argument("--nosplit", action="store_true"); ap.add_argument("--W0", type=int, default=8); ap.add_argument("--ke", type=int, default=0); ap.add_argument("--WL", default="nt"); ap.add_argument("--LD", default="sc1"); ap.add_argument("--ST", default="sc1")
    a = ap.parse_args()
    open(a.out, "w").write(gen(W=a.W, stamps=a.stamps, S0=a.S0, SPLITFFN=not a.nosplit, W0=a.W0, KEARLY=a.ke, WL=a.WL, LD=a.LD, ST=a.ST))
    print("WS_STAMP", hex(WS_STAMP), "WS_SIZE", hex(WS_SIZE), "LDS", LDS_BYTES)
```

```python
from asmlib import *
import math, struct, sys
LOG2E = math.log2(math.e)
def f2u(x): return struct.unpack("<I", struct.pack("<f", x))[0]
def fhex(x): return f"0x{f2u(x):08x}"

WS_EPOCH = 0x0
WS_CNT  = 0x1000
WS_Q2   = 0x10000
WS_GU   = WS_Q2 + 16*4096*8
WS_PART = WS_GU + 2*16*1792*8
WS_ML   = WS_PART + 256*512*8
WS_OUT2 = WS_ML + 256*32
WS_STAMP = WS_OUT2 + 32*4*448*8
WS_SIZE = WS_STAMP + 2048*64
L_STG = 131072
L_QL  = L_STG + 28672
L_OB  = L_QL + 1024
L_XN  = L_OB + 1536
L_CNT = L_XN + 896
LDS_BYTES = L_CNT + 64

S_K, S_V, S_WS, S_WA, S_WB, S_X = 8, 12, 16, 20, 24, 28
P_X, P_K, P_V, P_WQ, P_WO, P_BX, P_G, P_U, P_WD, P_OUT, P_DBG, P_WS = 40, 42, 44, 46, 48, 50, 52, 54, 56, 58, 60, 62
S_EP, S_TAG = 64, 65
S_LB = 66
S_SC = 67
S_N2 = 68
S_MK = 69
S_R = 70
S_SPIN = 71
S_PB = 98
S_WI = 99
S_T = 32

class R:
    LANE = 1
    DMA = 2; KA = 10; VA = 14
    T = 22
    M = 32; L = 33; ALPHA = 34; MN = 35; P = 36
    TAGV = 38; IDX = 39; MASK = 38
    S = 40
    Q = 44
    KS = 76
    VS = 108
    O = 140
    UG = 204
    CA = 236
    WA = 238
    MASK2 = 237
    NV = 240

class Cfg:
    W = 8
    nt = True
    S0 = 16
    V0EARLY = 4

def round_bf16(A, v):
    A(f"v_cvt_pk_bf16_f32 v{v}, v{v}, v{v}")
    A(f"v_lshlrev_b32 v{v}, 16, v{v}")

def gelu(A, g, t0, t1):
    A(f"""
    v_mul_f32 v{t0}, v{g}, v{g}
    v_mul_f32 v{t0}, v{t0}, v{g}
    v_mov_b32 v{t1}, {fhex(0.044715)}
    v_fma_f32 v{t0}, v{t0}, v{t1}, v{g}
    v_mul_f32 v{t0}, {fhex(2*0.7978845608028654*LOG2E)}, v{t0}
    v_exp_f32 v{t0}, v{t0}
    s_nop 0
    v_add_f32 v{t0}, 1.0, v{t0}
    v_rcp_f32 v{t0}, v{t0}
    s_nop 0
    v_fma_f32 v{t0}, v{t0}, -2.0, 1.0
    v_add_f32 v{t0}, 1.0, v{t0}
    v_mul_f32 v{t1}, 0.5, v{g}
    v_mul_f32 v{g}, v{t1}, v{t0}
    """)
    round_bf16(A, g)

def main_addrs(A):
    L = R.LANE; T = R.T
    A(f"""
    v_and_b32 v{T}, 15, v{L}
    v_lshrrev_b32 v{T+1}, 5, v{L}
    v_lshlrev_b32 v{T+2}, 1, v{T+1}
    v_xor_b32 v{T}, v{T}, v{T+2}
    v_lshlrev_b32 v{T}, 4, v{T}
    v_lshlrev_b32 v{T+1}, 9, v{T+1}
    v_and_b32 v{T+2}, 16, v{L}
    v_lshl_add_u32 v{T+1}, v{T+2}, 4, v{T+1}
    v_add_u32 v{T}, v{T}, v{T+1}
    v_add_u32 v{T+1}, 4096, v{T}
    """)
    for p in range(8):
        const = (4*(p & 3)) | (p >> 2)
        src = T if p < 4 else T+1
        if const == 0: A(f"v_mov_b32 v{R.DMA+p}, v{src}")
        else: A(f"v_xor_b32 v{R.DMA+p}, {const << 4}, v{src}")

def read_addrs(A):
    L = R.LANE; T = R.T
    A(f"""
    v_and_b32 v{T}, 15, v{L}
    v_lshlrev_b32 v{T+1}, 1, v{T}
    v_and_b32 v{T+1}, 15, v{T+1}
    v_lshrrev_b32 v{T+2}, 3, v{T}
    v_or_b32 v{T+1}, v{T+1}, v{T+2}
    v_lshrrev_b32 v{T+2}, 4, v{L}
    v_lshlrev_b32 v{T+2}, 1, v{T+2}
    v_xor_b32 v{T+1}, v{T+1}, v{T+2}
    v_lshlrev_b32 v{T+1}, 4, v{T+1}
    v_lshlrev_b32 v{T}, 9, v{T}
    v_add3_u32 v{T}, s{S_LB}, v{T}, v{T+1}
    """)
    for k, m in enumerate((0, 1, 8, 9)):
        if m == 0: A(f"v_mov_b32 v{R.KA+k}, v{T}")
        else: A(f"v_xor_b32 v{R.KA+k}, {m << 4}, v{T}")
    A(f"""
    v_lshrrev_b32 v{T}, 2, v{L}
    v_lshlrev_b32 v{T+1}, 1, v{T}
    v_and_b32 v{T+1}, 15, v{T+1}
    v_lshrrev_b32 v{T+2}, 3, v{T}
    v_or_b32 v{T+1}, v{T+1}, v{T+2}
    v_bfe_u32 v{T+2}, v{L}, 1, 1
    v_xor_b32 v{T+1}, v{T+1}, v{T+2}
    v_lshlrev_b32 v{T+1}, 4, v{T+1}
    v_lshlrev_b32 v{T}, 9, v{T}
    v_and_b32 v{T+2}, 1, v{L}
    v_lshl_add_u32 v{T}, v{T+2}, 3, v{T}
    v_add3_u32 v{T}, s{S_LB}, v{T}, v{T+1}
    v_add_u32 v{T}, 8192, v{T}
    """)
    for k in range(8):
        if k == 0: A(f"v_mov_b32 v{R.VA+k}, v{T}")
        else: A(f"v_xor_b32 v{R.VA+k}, {(2*k) << 4}, v{T}")

def dma_piece(A, p, ldsbase_s, ldsoff, srd_s, soff, throttle=True, W=None):
    W = W or Cfg.W
    if throttle: A(f"s_waitcnt vmcnt({W-1})")
    if p % 4 == 0:
        A(f"s_add_u32 m0, s{ldsbase_s}, {ldsoff + (p//4)*4096}")
        A("s_nop 0")
    A(f"buffer_load_dwordx4 v{R.DMA+p}, s[{srd_s}:{srd_s+3}], s{soff} offen offset:{(p&3)*1024}{' nt' if Cfg.nt else ''} lds")

def iss(A, ldsbase_s, ldsoff, srd_s, soff, throttle=True, rng=range(8)):
    return [(lambda p=p: dma_piece(A, p, ldsbase_s, ldsoff, srd_s, soff, throttle)) for p in rng]

class Pts:
    def __init__(self, fs): self.it = iter(fs) if fs else None
    def __call__(self, n=1):
        for _ in range(n):
            if self.it is not None:
                f = next(self.it, None)
                if f: f()
    def flush(self):
        if self.it is not None:
            for f in self.it: f()

def k_tile(A, issue, pre=None, half=None):
    pt = Pts(issue)
    for s in range(8):
        A(f"ds_read_b128 v[{R.KS+4*s}:{R.KS+4*s+3}], v{R.KA+(s&3)} offset:{(s>>2)*256}")
    if pre: pre()
    for s in range(8):
        A(f"s_waitcnt lgkmcnt({7-s})")
        A(f"v_mfma_f32_16x16x32_bf16 v[{R.S}:{R.S+3}], v[{R.KS+4*s}:{R.KS+4*s+3}], v[{R.Q+4*s}:{R.Q+4*s+3}], {'0' if s==0 else f'v[{R.S}:{R.S+3}]'}")
    pt(2)
    for k in range(4): A(f"v_xor_b32 v{R.KA+k}, 0x4000, v{R.KA+k}")
    T = R.T; S = R.S
    A("s_nop 3")
    A(f"v_cvt_pk_bf16_f32 v{T}, v{S}, v{S+1}")
    A(f"v_cvt_pk_bf16_f32 v{T+1}, v{S+2}, v{S+3}")
    A(f"v_lshlrev_b32 v{S}, 16, v{T}")
    A(f"v_and_b32 v{S+1}, 0xffff0000, v{T}")
    A(f"v_lshlrev_b32 v{S+2}, 16, v{T+1}")
    A(f"v_and_b32 v{S+3}, 0xffff0000, v{T+1}")
    if Cfg.HALF:
        for i in range(4): A(f"v_fma_f32 v{S+i}, v{S+i}, s{S_SC}, v{R.MASK}")
    else:
        for i in range(4): A(f"v_mul_f32 v{S+i}, s{S_SC}, v{S+i}")
    A(f"v_max3_f32 v{R.MN}, v{S}, v{S+1}, v{S+2}")
    A(f"v_max3_f32 v{R.MN}, v{R.MN}, v{S+3}, v{R.M}")
    pt()
    xrow_reduce(A, "v_max_f32", R.MN, T)
    pt()
    A(f"v_sub_f32 v{R.ALPHA}, v{R.M}, v{R.MN}")
    for i in range(4): A(f"v_sub_f32 v{S+i}, v{S+i}, v{R.MN}")
    A(f"v_exp_f32 v{R.ALPHA}, v{R.ALPHA}")
    for i in range(4): A(f"v_exp_f32 v{S+i}, v{S+i}")
    A(f"v_mov_b32 v{R.M}, v{R.MN}")
    if not half: pt()
    A(f"v_add_f32 v{T}, v{S}, v{S+1}")
    A(f"v_add_f32 v{T+1}, v{S+2}, v{S+3}")
    A(f"v_cvt_pk_bf16_f32 v{R.P}, v{S}, v{S+1}")
    A(f"v_cvt_pk_bf16_f32 v{R.P+1}, v{S+2}, v{S+3}")
    A(f"v_add_f32 v{T}, v{T}, v{T+1}")
    A(f"v_fma_f32 v{R.L}, v{R.L}, v{R.ALPHA}, v{T}")
    if half and issue:
        lb = half()
        pt.flush()
        A(f"{lb}:")
    else:
        pt.flush()

_lbl = [0]
def newlabel(s):
    _lbl[0] += 1
    return f"L_{s}_{_lbl[0]}"

def v_tile(A, issue, half=None, first=False):
    def rd(B): A(f"ds_read_b64_tr_b16 v[{R.VS+2*B}:{R.VS+2*B+1}], v{R.VA+(B&7)} offset:{(B>>3)*256}")
    for B in range(8): rd(B)
    if not first:
        lb = newlabel("norescale")
        A(f"v_cmp_neq_f32 vcc, 1.0, v{R.ALPHA}")
        A(f"s_cbranch_vccz {lb}")
        for i in range(64): A(f"v_mul_f32 v{R.O+i}, v{R.O+i}, v{R.ALPHA}")
        A(f"{lb}:")
    A("s_nop 1")
    for B in range(16):
        A(f"s_waitcnt lgkmcnt({7 if B < 8 else 15-B})")
        cin = "0" if first else f"v[{R.O+4*B}:{R.O+4*B+3}]"
        A(f"v_mfma_f32_16x16x16_bf16 v[{R.O+4*B}:{R.O+4*B+3}], v[{R.VS+2*B}:{R.VS+2*B+1}], v[{R.P}:{R.P+1}], {cin}")
        if B < 8: rd(B+8)
    if first:
        for k in range(8): A(f"v_xor_b32 v{R.VA+k}, 0x4000, v{R.VA+k}")
    if issue:
        for f in issue[:4]: f()
        if half:
            lb2 = half()
            for f in issue[4:]: f()
            A(f"{lb2}:")
        else:
            for f in issue[4:]: f()
        for k in range(8): A(f"v_xor_b32 v{R.VA+k}, 0x4000, v{R.VA+k}")
    return

def v_toggle(A):
    for k in range(8): A(f"v_xor_b32 v{R.VA+k}, 0x4000, v{R.VA+k}")

def tagcheck(A, acc, regs):
    t1, t2 = R.T+8, R.T+9
    regs = list(regs); i = 0; first = True
    while i < len(regs):
        if first:
            A(f"v_xor_b32 v{acc}, v{regs[i]}, v{R.TAGV}"); i += 1; first = False
        elif i + 1 < len(regs):
            A(f"v_xor_b32 v{t1}, v{regs[i]}, v{R.TAGV}")
            A(f"v_xor_b32 v{t2}, v{regs[i+1]}, v{R.TAGV}")
            A(f"v_or3_b32 v{acc}, v{acc}, v{t1}, v{t2}")
            i += 2
        else:
            A(f"v_xor_b32 v{t1}, v{regs[i]}, v{R.TAGV}")
            A(f"v_or_b32 v{acc}, v{acc}, v{t1}")
            i += 1

def poll_loop(A, name, loads, tagregs, acc, first_wait=None, between=None, sleep=0):
    lp = newlabel(name); done = newlabel(name + "_done"); chk = newlabel(name + "_chk")
    A(f"s_mov_b32 s{S_SPIN}, 0x40000")
    if first_wait is not None:
        loads()
        if between: between()
        A(f"s_waitcnt vmcnt({first_wait})")
        A(f"s_branch {chk}")
    A(f"{lp}:")
    if sleep: A(f"s_sleep {sleep}")
    loads()
    A("s_waitcnt vmcnt(0)")
    A(f"{chk}:")
    tagcheck(A, acc, tagregs)
    A(f"v_cmp_ne_u32 vcc, 0, v{acc}")
    A(f"s_cbranch_vccz {done}")
    A(f"s_sub_u32 s{S_SPIN}, s{S_SPIN}, 1")
    A(f"s_cmp_lg_u32 s{S_SPIN}, 0")
    A(f"s_cbranch_scc1 {lp}")
    A(f"{done}:")

def stamp_store(A, n):
    if not Asm.stamps: return
    A(f"s_lshl_b32 s{S_T}, s2, 3"); A(f"s_add_u32 s{S_T}, s{S_T}, s3"); A(f"s_lshl_b32 s{S_T}, s{S_T}, 6"); A(f"s_add_u32 s{S_T}, s{S_T}, {WS_STAMP}")
    A("s_mov_b64 exec, 1")
    A("v_mov_b32 v2, 0")
    for i in range(n):
        A(f"v_mov_b32 v3, s{72+2*i}")
        A(f"buffer_store_dword v3, v2, s[{S_WS}:{S_WS+3}], s{S_T} offen offset:{4*i}")
    A("s_mov_b64 exec, -1")


def lds_arrive(A, off, vaddr, vone):
    A("s_mov_b64 exec, 1")
    A(f"ds_add_u32 v{vaddr}, v{vone} offset:{off}")
    A("s_mov_b64 exec, -1")

def lds_wait(A, off, target, vaddr, vtmp, sleep=0):
    lp = newlabel("ldswait"); done = newlabel("ldsdone")
    A(f"s_mov_b32 s{S_SPIN}, 0x400000")
    A(f"{lp}:")
    A(f"ds_read_b32 v{vtmp}, v{vaddr} offset:{off}")
    A("s_waitcnt lgkmcnt(0)")
    A(f"v_readfirstlane_b32 s{S_T}, v{vtmp}")
    A(f"s_cmp_ge_u32 s{S_T}, {target}")
    A(f"s_cbranch_scc1 {done}")
    if sleep: A(f"s_sleep {sleep}")
    A(f"s_sub_u32 s{S_SPIN}, s{S_SPIN}, 1")
    A(f"s_cmp_lg_u32 s{S_SPIN}, 0")
    A(f"s_cbranch_scc1 {lp}")
    A(f"{done}:")

def gen_kernel(A, name):
    kernel_header(A, name)
    T = R.T; L = R.LANE
    END = f"{name}_done"; AUX = f"{name}_aux"
    A(f"""
    s_cmp_ge_u32 s2, 256
    s_cbranch_scc1 {END}
    STAMP0
    s_load_dwordx16 s[40:55], s[0:1], 0
    s_load_dwordx8 s[56:63], s[0:1], 64
    v_and_b32 v{L}, 63, v0
    v_lshrrev_b32 v2, 6, v0
    s_nop 0
    v_readfirstlane_b32 s3, v2
    s_nop 3
    s_cmp_ge_u32 s3, 4
    s_cbranch_scc1 {AUX}
    """)
    main_addrs(A)
    A(f"""
    s_lshl_b32 s{S_LB}, s3, 15
    s_lshr_b32 s4, s2, 3
    s_lshl_b32 s{S_PB}, s4, 22
    s_and_b32 s5, s2, 7
    s_lshl_b32 s5, s5, 2
    s_add_u32 s{S_WI}, s5, s3
    s_lshl_b32 s5, s{S_WI}, 13
    s_add_u32 s{S_N2}, s{S_PB}, s5
    s_mov_b32 s{S_SC}, {fhex(0.0625*LOG2E)}
    s_mov_b32 s{S_MK}, s{S_LB}
    s_mov_b32 s{S_R}, 2
    s_waitcnt lgkmcnt(0)
    STAMP1
    """)
    srd(A, S_K, P_K, P_K+1, 128 << 20)
    srd(A, S_V, P_V, P_V+1, 128 << 20)
    srd(A, S_WS, P_WS, P_WS+1, WS_SIZE)
    read_addrs(A)
    A(f"v_mov_b32 v{R.M}, {fhex(-1e30)}")
    A(f"v_mov_b32 v{R.L}, 0")
    if Cfg.HALF:
        A(f"v_mov_b32 v{R.MASK}, 0")
        A(f"v_mov_b32 v{R.MASK2}, 0")
        A(f"v_mov_b32 v{T}, {fhex(-1e30)}")
        A(f"v_cmp_lt_u32 vcc, 31, v{L}")
        A("s_nop 1")
        A(f"v_cndmask_b32 v{R.MASK2}, v{R.MASK2}, v{T}, vcc")
    A(f"""
    v_and_b32 v{T+5}, 15, v{L}
    v_lshlrev_b32 v{T+5}, 9, v{T+5}
    v_lshrrev_b32 v{T+6}, 4, v{L}
    v_lshl_add_u32 v{T+5}, v{T+6}, 5, v{T+5}
    v_add_u32 v{T+5}, {L_QL}, v{T+5}
    v_mov_b32 v{T+7}, {L_CNT}
    """)
    if Cfg.S0 < 16:
        A(f"s_lshr_b32 s4, s2, 3"); A(f"s_lshl_b32 s4, s4, 8"); A(f"s_add_u32 s4, s4, {WS_CNT}"); A(f"v_mov_b32 v{R.CA}, s4")
    A("s_barrier")
    if not Cfg.SIX:
        for i in range(64): A(f"v_mov_b32 v{R.O+i}, 0")
    if Cfg.QZEROFIRST:
        for i in range(32): A(f"v_mov_b32 v{R.Q+i}, 0")
    for p in range(8): dma_piece(A, p, S_LB, 0, S_K, S_N2, throttle=(0 < Cfg.W0 <= p), W=Cfg.W0)
    A("STAMP2")
    if not Cfg.QZEROFIRST:
        for i in range(32): A(f"v_mov_b32 v{R.Q+i}, 0")
    if Cfg.PAUSE:
        lds_wait(A, 12, 4, T+7, T+8, sleep=1)
    thr = Cfg.W0 > 0
    for p in range(8): dma_piece(A, p, S_LB, 8192, S_V, S_N2, throttle=thr, W=Cfg.W0)
    A(f"s_add_u32 s{S_N2}, s{S_N2}, {32*8192}")
    for p in range(8): dma_piece(A, p, S_LB, 16384, S_K, S_N2, throttle=thr, W=Cfg.W0)
    for p in range(8): dma_piece(A, p, S_LB, 24576, S_V, S_N2, throttle=thr, W=Cfg.W0)
    A(f"s_add_u32 s{S_N2}, s{S_N2}, {32*8192}")
    def reg_piece(p, dst, srd_s):
        if thr: A(f"s_waitcnt vmcnt({Cfg.W0-1})")
        A(f"buffer_load_dwordx4 v[{dst+4*p}:{dst+4*p+3}], v{R.DMA+p}, s[{srd_s}:{srd_s+3}], s{S_N2} offen offset:{(p&3)*1024}{' nt' if Cfg.nt else ''}")
    if Cfg.SIX:
        for p in range(8): reg_piece(p, R.O, S_K)
        for p in range(8): reg_piece(p, R.UG, S_V)
        A(f"s_add_u32 s{S_N2}, s{S_N2}, {32*8192}")
        A(f"v_lshlrev_b32 v{R.WA}, 4, v{L}")
        A(f"v_add_u32 v{R.WA}, s{S_LB}, v{R.WA}")
    A("STAMP6")
    lds_wait(A, 4, 4, T+7, T+8, sleep=1)
    A("STAMP7")
    A("EXEC 0x0003000300030003")
    for s_ in range(8):
        A(f"ds_read_b128 v[{R.Q+4*s_}:{R.Q+4*s_+3}], v{T+5} offset:{(s_&1)*16 + (s_>>1)*128}")
    A("s_mov_b64 exec, -1")
    A("s_waitcnt lgkmcnt(0)")
    A("STAMP8")
    if Cfg.SIX:
        def k2write():
            A("s_waitcnt vmcnt(8)")
            for p in range(8):
                A(f"ds_write_b128 v{R.WA}, v[{R.O+4*p}:{R.O+4*p+3}] offset:{p*1024}")
        k_tile(A, [k2write])
        A("s_waitcnt lgkmcnt(0)")
        v_tile(A, None, first=True)
        A(f"s_xor_b32 s{S_MK}, s{S_MK}, 0x4000")
        A(f"s_mov_b32 s{S_R}, 3")
    LOOP = f"{name}_loop"
    A(f"{LOOP}:")
    def pre():
        if Cfg.S0 < 16:
            lb = newlabel("noatom")
            A(f"s_cmp_lt_u32 s{S_R}, {Cfg.S0 - 1}")
            A(f"s_cbranch_scc1 {lb}")
            A(f"v_mov_b32 v{R.IDX}, 1")
            A("s_mov_b64 exec, 1")
            A(f"buffer_atomic_add v{R.IDX}, v{R.CA}, s[{S_WS}:{S_WS+3}], 0 offen sc0 sc1")
            A("s_mov_b64 exec, -1")
            A(f"{lb}:")
    TW = 12 if Cfg.HALF else 24
    def halfskip():
        lb = newlabel("halfskip")
        A(f"s_cmp_ge_u32 s{S_R}, {Cfg.S0}")
        A(f"s_cbranch_scc1 {lb}")
        return lb
    hs = halfskip if Cfg.HALF else None
    if Cfg.HALF:
        lb = newlabel("nomask")
        A(f"s_cmp_eq_u32 s{S_R}, {Cfg.S0 + 2}")
        A(f"s_cbranch_scc0 {lb}")
        A(f"v_mov_b32 v{R.MASK}, v{R.MASK2}")
        A(f"{lb}:")
    A(f"s_waitcnt vmcnt({TW})")
    k_tile(A, iss(A, S_MK, 0, S_K, S_N2), pre=pre, half=hs)
    if Cfg.SIX:
        lb = newlabel("nov2")
        A(f"s_cmp_eq_u32 s{S_R}, 3")
        A(f"s_cbranch_scc0 {lb}")
        A("s_waitcnt vmcnt(8)")
        for p in range(8):
            A(f"ds_write_b128 v{R.WA}, v[{R.UG+4*p}:{R.UG+4*p+3}] offset:{8192 + p*1024}")
        A("s_waitcnt lgkmcnt(0)")
        A(f"{lb}:")
    A(f"s_waitcnt vmcnt({TW})")
    v_tile(A, iss(A, S_MK, 8192, S_V, S_N2), half=hs)
    A(f"s_xor_b32 s{S_MK}, s{S_MK}, 0x4000")
    A(f"s_add_u32 s{S_R}, s{S_R}, 1")
    if Cfg.S0 < 16:
        lb = newlabel("static"); lb2 = newlabel("idx")
        A(f"s_cmp_lt_u32 s{S_R}, {Cfg.S0}")
        A(f"s_cbranch_scc1 {lb}")
        A(f"s_waitcnt vmcnt({8 if Cfg.HALF else 16})")
        A(f"v_readfirstlane_b32 s4, v{R.IDX}")
        A(f"s_nop 0")
        if Cfg.HALF:
            A(f"s_lshl_b32 s5, s4, 12")
            A(f"s_add_u32 s5, s5, {Cfg.S0*32*8192}")
            A(f"s_add_u32 s{S_N2}, s{S_PB}, s5")
            A(f"s_cmp_lt_u32 s4, {(16-Cfg.S0)*64}")
            A(f"s_cbranch_scc1 {LOOP}")
            A(f"s_branch {name}_epi")
        else:
            A(f"s_add_u32 s4, s4, {Cfg.S0*32}")
            A(f"s_branch {lb2}")
        A(f"{lb}:")
        A(f"s_lshl_b32 s4, s{S_R}, 5")
        A(f"s_add_u32 s4, s4, s{S_WI}")
        A(f"{lb2}:")
    else:
        A(f"s_lshl_b32 s4, s{S_R}, 5")
        A(f"s_add_u32 s4, s4, s{S_WI}")
    A(f"s_lshl_b32 s5, s4, 13")
    A(f"s_add_u32 s{S_N2}, s{S_PB}, s5")
    A("s_cmp_lt_u32 s4, 512")
    A(f"s_cbranch_scc1 {LOOP}")
    A(f"{name}_epi:")
    def maskupd(delta):
        if Cfg.HALF:
            lb = newlabel("nomask")
            A(f"s_cmp_ge_u32 s{S_R}, {Cfg.S0 + 2 - delta}")
            A(f"s_cbranch_scc0 {lb}")
            A(f"v_mov_b32 v{R.MASK}, v{R.MASK2}")
            A(f"{lb}:")
    maskupd(0)
    A(f"s_waitcnt vmcnt({12 if Cfg.HALF else 24})")
    k_tile(A, None)
    A(f"s_waitcnt vmcnt({8 if Cfg.HALF else 16})")
    v_tile(A, None)
    v_toggle(A)
    maskupd(1)
    A(f"s_waitcnt vmcnt({4 if Cfg.HALF else 8})")
    k_tile(A, None)
    W0 = R.UG
    A(f"""
    v_and_b32 v{W0}, 15, v{L}
    v_lshlrev_b32 v{W0}, 10, v{W0}
    v_lshrrev_b32 v{W0+1}, 4, v{L}
    v_lshl_add_u32 v{W0}, v{W0+1}, 4, v{W0}
    v_add_u32 v{W0}, s{S_LB}, v{W0}
    v_and_b32 v{W0+2}, 15, v{L}
    v_lshlrev_b32 v{W0+2}, 3, v{W0+2}
    v_add_u32 v{W0+2}, s{S_LB}, v{W0+2}
    """)
    xrow_reduce(A, "v_add_f32", R.L, T)
    A(f"v_mov_b32 v{W0+4}, v{R.M}")
    A(f"v_mov_b32 v{W0+5}, v{R.L}")
    A("s_waitcnt vmcnt(0)")
    A("STAMP9")
    v_tile(A, None)
    A("s_mov_b64 exec, 3")
    A(f"ds_write_b64 v{W0+2}, v[{W0+4}:{W0+5}] offset:2048")
    A("EXEC 0x0003000300030003")
    for B in range(16):
        A(f"ds_write_b128 v{W0}, v[{R.O+4*B}:{R.O+4*B+3}] offset:{B*64}")
    A("s_mov_b64 exec, -1")
    A("s_waitcnt lgkmcnt(0)")
    A("s_barrier")
    A("STAMP10")
    if Asm.stamps:
        A("s_mov_b64 s[94:95], 0"); A("s_mov_b64 s[96:97], 0"); A("s_mov_b64 s[78:79], 0"); A("s_mov_b64 s[80:81], 0"); A("s_mov_b64 s[82:83], 0")
        stamp_store(A, 13)
    A("s_endpgm")

    A(f"{AUX}:")
    A("s_sub_u32 s3, s3, 4")
    A(f"""
    v_lshrrev_b32 v{T+4}, 3, v{L}
    v_and_b32 v{T+5}, 7, v{L}
    v_lshlrev_b32 v{T+5}, 4, v{T+5}
    v_lshl_add_u32 v{T+6}, v{T+4}, 13, v{T+5}
    s_movk_i32 s{S_T}, 3584
    v_mul_lo_u32 v{T+7}, v{T+4}, s{S_T}
    v_add_u32 v{T+7}, v{T+7}, v{T+5}
    v_lshlrev_b32 v{T+3}, 4, v{L}
    s_and_b32 s33, s2, 3
    s_lshr_b32 s34, s2, 2
    s_min_u32 s35, s34, 55
    s_cmp_ge_u32 s35, 28
    s_cselect_b32 s36, 28, 0
    s_cselect_b32 s37, 1, 0
    s_sub_u32 s35, s35, s36
    s_mul_i32 s38, s33, 112
    s_mul_i32 s39, s3, 28
    s_add_u32 s38, s38, s39
    s_lshl_b32 s4, s38, 13
    s_lshl_b32 s5, s34, 7
    s_add_u32 s4, s4, s5
    s_mul_i32 s6, s38, 3584
    s_lshl_b32 s5, s35, 7
    s_add_u32 s6, s6, s5
    s_mul_i32 s7, s3, {28*128}
    s_mul_i32 s39, s3, 896
    v_mov_b32 v44, 0
    v_mov_b32 v45, 0
    v_mov_b32 v46, 0
    v_mov_b32 v47, 0
    """)
    CN, ONE = R.CA, R.CA+1
    FV = R.UG + 30
    A(f"v_mov_b32 v{CN}, {L_CNT}")
    A(f"v_mov_b32 v{ONE}, 1")
    A(f"v_mov_b32 v{FV}, v{T+7}")
    lb = newlabel("nozero")
    A("s_cmp_eq_u32 s3, 0")
    A(f"s_cbranch_scc0 {lb}")
    A("s_mov_b64 exec, 1")
    A(f"ds_write_b64 v{CN}, v[44:45]")
    A(f"ds_write_b64 v{CN}, v[44:45] offset:8")
    A("s_mov_b64 exec, -1")
    A(f"{lb}:")
    A(f"""
    s_waitcnt lgkmcnt(0)
    STAMP1
    s_load_dword s{S_EP}, s[{P_WS}:{P_WS+1}], {WS_EPOCH}
    """)
    srd(A, S_X, P_X, P_X+1, 3584)
    srd(A, S_WS, P_WS, P_WS+1, WS_SIZE)
    srd(A, S_WA, P_WQ, P_WQ+1, 448*4096*2)
    if Cfg.S0 < 16:
        lb = newlabel("noinit")
        A(f"""
        s_and_b32 s36, s2, 31
        s_cmp_lt_u32 s36, 4
        s_cbranch_scc0 {lb}
        s_cmp_eq_u32 s3, 0
        s_cbranch_scc0 {lb}
        s_lshl_b32 s36, s36, 3
        s_lshr_b32 s38, s2, 5
        s_add_u32 s36, s36, s38
        s_lshl_b32 s36, s36, 8
        s_add_u32 s36, s36, {WS_CNT}
        s_mov_b64 exec, 1
        buffer_store_dword v44, v44, s[{S_WS}:{S_WS+3}], s36 offen sc1
        s_mov_b64 exec, -1
        {lb}:
        """)
    A("EXEC 0x00ffffffffffffff")
    A(f"buffer_load_dwordx4 v[44:47], v{T+3}, s[{S_X}:{S_X+3}], s39 offen {Cfg.WL}")
    A("s_mov_b64 exec, -1")
    A("s_barrier")
    for j in range(4):
        A(f"s_add_u32 m0, s7, {L_STG + j*1024}")
        A("EXEC 0xffffffff" if j == 3 else "s_nop 0")
        A(f"buffer_load_dwordx4 v{T+6}, s[{S_WA}:{S_WA+3}], s4 offen {Cfg.WL} lds")
        if j < 3: A(f"s_add_u32 s4, s4, {8*8192}")
    A("s_mov_b64 exec, -1")
    A("STAMP2")
    A(f"s_cmp_eq_u32 s37, 0")
    A(f"s_cselect_b32 s{S_WB}, s{P_G}, s{P_U}")
    A(f"s_cselect_b32 s{S_WB+1}, s{P_G+1}, s{P_U+1}")
    A(f"s_and_b32 s{S_WB+1}, s{S_WB+1}, 0xffff")
    A(f"s_mov_b32 s{S_WB+2}, {448*1792*2}")
    A(f"s_mov_b32 s{S_WB+3}, 0x20000")
    AA, BA, QP, GP, XW = R.UG+24, R.UG+25, R.UG+26, R.UG+27, R.UG+28
    A(f"""
    v_lshrrev_b32 v{T}, 2, v{L}
    v_lshlrev_b32 v{T}, 7, v{T}
    v_and_b32 v{T+1}, 3, v{L}
    v_lshl_add_u32 v{T}, v{T+1}, 3, v{T}
    s_lshl_b32 s4, s3, 5
    s_add_u32 s4, s4, {L_STG}
    v_add_u32 v{AA}, s4, v{T}
    v_mul_u32_u24 v{T+1}, 224, v{T+1}
    v_lshrrev_b32 v{T+2}, 4, v{L}
    v_lshl_add_u32 v{T+1}, v{T+2}, 3, v{T+1}
    v_add_u32 v{BA}, {L_XN}, v{T+1}
    v_and_b32 v{T+4}, 15, v{L}
    v_lshlrev_b32 v{T+2}, 5, v{T+2}
    v_lshl_add_u32 v{QP}, v{T+4}, 15, v{T+2}
    s_movk_i32 s4, 14336
    v_mul_lo_u32 v{GP}, v{T+4}, s4
    v_add_u32 v{GP}, v{GP}, v{T+2}
    s_mul_i32 s4, s3, 224
    s_mul_i32 s5, s33, 224
    s_sub_u32 s4, s4, s5
    s_add_u32 s4, s4, {L_XN}
    v_add_u32 v{XW}, s4, v{T+3}
    s_mul_i32 s38, s33, 14
    s_lshl_b64 s[92:93], 0x3fff, s38
    s_lshl_b32 s5, s3, 7
    s_lshl_b32 s4, s34, 9
    s_add_u32 s4, s4, s5
    s_lshl_b32 s39, s33, 17
    s_add_u32 s4, s4, s39
    s_add_u32 s4, s4, {WS_Q2}
    s_lshl_b32 s36, s35, 9
    s_add_u32 s36, s36, s5
    s_mul_i32 s5, s37, {16*1792*8}
    s_add_u32 s36, s36, s5
    s_mul_i32 s5, s33, {4*1792*8}
    s_add_u32 s36, s36, s5
    s_add_u32 s36, s36, {WS_GU}
    s_mov_b32 s5, 0x000f000f
    s_waitcnt lgkmcnt(0)
    """)
    G = 92; F = 48
    A(f"""
    s_mul_i32 s{S_TAG}, s{S_EP}, 0x9E3779B1
    s_add_u32 s{S_TAG}, s{S_TAG}, 0x7F4A7C15
    v_mov_b32 v{R.TAGV}, s{S_TAG}
    v_mov_b32 v{G+1}, s{S_TAG}
    v_mov_b32 v{G+3}, s{S_TAG}
    v_mov_b32 v{G+5}, s{S_TAG}
    v_mov_b32 v{G+7}, s{S_TAG}
    s_waitcnt vmcnt(4)
    """)
    for i in range(4):
        A(f"v_lshlrev_b32 v{F+2*i}, 16, v{44+i}")
        A(f"v_and_b32 v{F+2*i+1}, 0xffff0000, v{44+i}")
    S0 = T; Q0 = T+4; D0 = T+8
    A(f"v_pk_add_f32 v[{S0}:{S0+1}], v[{F}:{F+1}], v[{F+2}:{F+3}]")
    A(f"v_pk_add_f32 v[{Q0}:{Q0+1}], v[{F+4}:{F+5}], v[{F+6}:{F+7}]")
    A(f"v_pk_add_f32 v[{S0}:{S0+1}], v[{S0}:{S0+1}], v[{Q0}:{Q0+1}]")
    A(f"v_add_f32 v{S0}, v{S0}, v{S0+1}")
    wave_reduce(A, "v_add_f32", S0, T+2)
    A(f"v_mul_f32 v{S0}, {fhex(1.0/448)}, v{S0}")
    A(f"v_mov_b32 v{Q0}, 0"); A(f"v_mov_b32 v{Q0+1}, 0")
    A(f"v_mov_b32 v{S0+1}, v{S0}")
    A("EXEC 0x00ffffffffffffff")
    for i in range(4):
        A(f"v_pk_add_f32 v[{D0}:{D0+1}], v[{F+2*i}:{F+2*i+1}], v[{S0}:{S0+1}] neg_lo:[0,1] neg_hi:[0,1]")
        A(f"v_pk_fma_f32 v[{Q0}:{Q0+1}], v[{D0}:{D0+1}], v[{D0}:{D0+1}], v[{Q0}:{Q0+1}]")
    A("s_mov_b64 exec, -1")
    A(f"v_add_f32 v{Q0}, v{Q0}, v{Q0+1}")
    wave_reduce(A, "v_add_f32", Q0, T+2)
    A(f"v_mul_f32 v{Q0}, {fhex(1.0/448)}, v{Q0}")
    round_bf16(A, Q0)
    A(f"v_add_f32 v{Q0}, {fhex(1e-5)}, v{Q0}")
    round_bf16(A, Q0)
    A(f"v_sqrt_f32 v{Q0}, v{Q0}")
    round_bf16(A, S0)
    round_bf16(A, Q0)
    A(f"v_mov_b32 v{S0+1}, v{S0}")
    A(f"v_rcp_f32 v{Q0}, v{Q0}")
    for i in range(4):
        A(f"v_pk_add_f32 v[{F+2*i}:{F+2*i+1}], v[{F+2*i}:{F+2*i+1}], v[{S0}:{S0+1}] neg_lo:[0,1] neg_hi:[0,1]")
    A(f"v_mov_b32 v{Q0+1}, v{Q0}")
    for i in range(4):
        A(f"v_cvt_pk_bf16_f32 v{44+i}, v{F+2*i}, v{F+2*i+1}")
    for i in range(4):
        A(f"v_lshlrev_b32 v{F+2*i}, 16, v{44+i}")
        A(f"v_and_b32 v{F+2*i+1}, 0xffff0000, v{44+i}")
    for i in range(4):
        A(f"v_pk_mul_f32 v[{F+2*i}:{F+2*i+1}], v[{F+2*i}:{F+2*i+1}], v[{Q0}:{Q0+1}]")
    for i in range(4):
        A(f"v_cvt_pk_bf16_f32 v{44+i}, v{F+2*i}, v{F+2*i+1}")
    A(f"""
    s_mov_b64 exec, s[92:93]
    ds_write_b128 v{XW}, v[44:47]
    s_mov_b64 exec, -1
    STAMP3
    s_waitcnt vmcnt(0) lgkmcnt(0)
    """)
    lds_arrive(A, 0, CN, ONE)
    lds_wait(A, 0, 4, CN, T+8)
    A("STAMP4")
    XV = 76; AW = 108; AW2 = 128; C1 = 40; C2 = 124
    for s_ in range(7):
        A(f"ds_read_b64 v[{XV+2*s_}:{XV+2*s_+1}], v{BA} offset:{s_*32}")
        A(f"ds_read_b64_tr_b16 v[{AW+2*s_}:{AW+2*s_+1}], v{AA} offset:{s_*2048}")
    for s_ in range(7):
        A(f"s_waitcnt lgkmcnt({12-2*s_})")
        A(f"v_mfma_f32_16x16x16_bf16 v[{C1}:{C1+3}], v[{AW+2*s_}:{AW+2*s_+1}], v[{XV+2*s_}:{XV+2*s_+1}], {'0' if s_==0 else f'v[{C1}:{C1+3}]'}")
    def publish(C, vaddr, soff):
        A(f"s_mov_b32 exec_lo, s5"); A(f"s_mov_b32 exec_hi, s5")
        A("s_nop 5")
        A(f"v_mov_b32 v{G}, v{C}"); A(f"v_mov_b32 v{G+2}, v{C+1}"); A(f"v_mov_b32 v{G+4}, v{C+2}"); A(f"v_mov_b32 v{G+6}, v{C+3}")
        A(f"buffer_store_dwordx4 v[{G}:{G+3}], v{vaddr}, s[{S_WS}:{S_WS+3}], s{soff} offen {Cfg.ST}")
        A(f"buffer_store_dwordx4 v[{G+4}:{G+7}], v{vaddr}, s[{S_WS}:{S_WS+3}], s{soff} offen offset:16 {Cfg.ST}")
        A("s_mov_b64 exec, -1")
    publish(C1, QP, 4)
    if Cfg.PAUSE: lds_arrive(A, 12, CN, ONE)
    A("STAMP5")
    for j in range(4):
        A(f"s_add_u32 m0, s7, {L_STG + 14336 + j*1024}")
        A("EXEC 0xffffffff" if j == 3 else "s_nop 0")
        A(f"buffer_load_dwordx4 v{FV}, s[{S_WB}:{S_WB+3}], s6 offen {Cfg.WL} lds")
        if j < 3: A(f"s_add_u32 s6, s6, {8*3584}")
    A("s_mov_b64 exec, -1")
    A("s_waitcnt vmcnt(0)")
    lds_arrive(A, 8, CN, ONE)
    lds_wait(A, 8, 4, CN, T+8)
    for s_ in range(7):
        A(f"ds_read_b64_tr_b16 v[{AW2+2*s_}:{AW2+2*s_+1}], v{AA} offset:{14336 + s_*2048}")
    for s_ in range(7):
        A(f"s_waitcnt lgkmcnt({6-s_})" if not Asm.stamps else "s_waitcnt lgkmcnt(0)")
        A(f"v_mfma_f32_16x16x16_bf16 v[{C2}:{C2+3}], v[{AW2+2*s_}:{AW2+2*s_+1}], v[{XV+2*s_}:{XV+2*s_+1}], {'0' if s_==0 else f'v[{C2}:{C2+3}]'}")
    lb = newlabel("noffn")
    A("s_cmp_ge_u32 s2, 224")
    A(f"s_cbranch_scc1 {lb}")
    publish(C2, GP, 36)
    A(f"{lb}:")
    A("STAMP6")
    QG = 44
    A(f"""
    s_lshr_b32 s4, s2, 6
    s_bfe_u32 s5, s2, 0x30003
    s_lshl_b32 s6, s4, 15
    s_lshl_b32 s7, s5, 12
    s_add_u32 s6, s6, s7
    s_lshl_b32 s7, s3, 10
    s_add_u32 s6, s6, s7
    s_add_u32 s6, s6, {WS_Q2}
    v_lshlrev_b32 v{T}, 4, v{L}
    v_lshlrev_b32 v{T+2}, 2, v{L}
    s_lshl_b32 s4, s3, 8
    s_add_u32 s4, s4, {L_QL}
    v_add_u32 v{T+2}, s4, v{T+2}
    """)
    def qloads():
        for kq in range(4):
            A(f"s_add_u32 s38, s6, {kq*131072}")
            A(f"buffer_load_dwordx4 v[{QG+4*kq}:{QG+4*kq+3}], v{T}, s[{S_WS}:{S_WS+3}], s38 offen {Cfg.LD}")
    poll_loop(A, "pollq", qloads, [QG+4*k+1 for k in range(4)] + [QG+4*k+3 for k in range(4)], T+1)
    A(f"""
    v_add_f32 v{QG}, v{QG}, v{QG+4}
    v_add_f32 v{QG+8}, v{QG+8}, v{QG+12}
    v_add_f32 v{QG+2}, v{QG+2}, v{QG+6}
    v_add_f32 v{QG+10}, v{QG+10}, v{QG+14}
    v_add_f32 v{QG}, v{QG}, v{QG+8}
    v_add_f32 v{QG+2}, v{QG+2}, v{QG+10}
    v_cvt_pk_bf16_f32 v{QG}, v{QG}, v{QG+2}
    ds_write_b32 v{T+2}, v{QG}
    s_waitcnt lgkmcnt(0)
    """)
    lds_arrive(A, 4, CN, ONE)
    A("STAMP7")
    UG = R.UG
    srd(A, S_WA, P_WO, P_WO+1, 4096*448*2)
    srd(A, S_WB, P_WD, P_WD+1, 1792*448*2)
    A(f"""
    v_lshrrev_b32 v{T+3}, 3, v{L}
    s_movk_i32 s4, 896
    v_mul_lo_u32 v{T+3}, v{T+3}, s4
    v_and_b32 v{T+4}, 7, v{L}
    v_lshl_add_u32 v{T+3}, v{T+4}, 4, v{T+3}
    s_and_b32 s4, s2, 7
    s_lshr_b32 s5, s2, 6
    s_bfe_u32 s6, s2, 0x30003
    s_min_u32 s6, s6, 6
    s_lshl_b32 s7, s4, 9
    s_lshl_b32 s38, s5, 7
    s_add_u32 s7, s7, s38
    s_lshl_b32 s38, s3, 5
    s_add_u32 s7, s7, s38
    s_mul_i32 s7, s7, 896
    s_lshl_b32 s6, s6, 7
    s_add_u32 s7, s7, s6
    s_lshl_b32 s38, s3, 12
    """)
    lds_wait(A, 4, 4, CN, T+8, sleep=1)
    for j in range(4):
        A(f"s_add_u32 m0, s38, {L_STG + j*1024}")
        A("s_nop 0")
        A(f"buffer_load_dwordx4 v{T+3}, s[{S_WA}:{S_WA+3}], s7 offen {Cfg.WL} lds")
        if j < 3: A(f"s_add_u32 s7, s7, {8*896}")
    A(f"""
    s_lshl_b32 s4, s4, 2
    s_add_u32 s4, s4, s5
    s_mul_i32 s33, s4, {56*8}
    s_mul_i32 s4, s4, 56
    s_lshl_b32 s5, s3, 4
    s_add_u32 s4, s4, s5
    s_mul_i32 s4, s4, 896
    s_add_u32 s4, s4, s6
    s_lshl_b32 s38, s3, 11
    """)
    for j in range(2):
        A(f"s_add_u32 m0, s38, {L_STG + 16384 + j*1024}")
        A("s_nop 0")
        A(f"buffer_load_dwordx4 v{T+3}, s[{S_WB}:{S_WB+3}], s4 offen {Cfg.WL} lds")
        if j < 1: A(f"s_add_u32 s4, s4, {8*896}")
    A(f"""
    s_mul_i32 s38, s3, {1792*8}
    s_add_u32 s33, s33, s38
    s_add_u32 s33, s33, {WS_GU}
    v_lshlrev_b32 v{T}, 4, v{L}
    """)
    for i in range(8):
        A(f"v_mov_b32 v{UG+4*i+1}, v{R.TAGV}"); A(f"v_mov_b32 v{UG+4*i+3}, v{R.TAGV}")
        A(f"v_mov_b32 v{UG+4*i}, 0"); A(f"v_mov_b32 v{UG+4*i+2}, 0")
    def guloads():
        A("EXEC 0x0fffffff")
        for i in range(8):
            A(f"s_add_u32 s38, s33, {(i>>2)*16*1792*8 + (i&3)*4*1792*8}")
            A(f"buffer_load_dwordx4 v[{UG+4*i}:{UG+4*i+3}], v{T}, s[{S_WS}:{S_WS+3}], s38 offen {Cfg.LD}")
        A("s_mov_b64 exec, -1")
    poll_loop(A, "pollgu", guloads, [UG+4*i+1 for i in range(8)] + [UG+4*i+3 for i in range(8)], T+1)
    for base, off in ((UG, 0), (UG, 2), (UG+16, 0), (UG+16, 2)):
        A(f"v_add_f32 v{base+off}, v{base+off}, v{base+4+off}")
        A(f"v_add_f32 v{base+8+off}, v{base+8+off}, v{base+12+off}")
        A(f"v_add_f32 v{base+off}, v{base+off}, v{base+8+off}")
        round_bf16(A, base+off)
    gelu(A, UG, T+4, T+5)
    gelu(A, UG+2, T+4, T+5)
    A(f"""
    v_mul_f32 v{UG}, v{UG}, v{UG+16}
    v_mul_f32 v{UG+2}, v{UG+2}, v{UG+18}
    v_cvt_pk_bf16_f32 v{UG}, v{UG}, v{UG+2}
    s_mul_i32 s4, s3, 384
    s_add_u32 s4, s4, {L_OB+256}
    v_lshlrev_b32 v{T+1}, 2, v{L}
    v_add_u32 v{T+2}, s4, v{T+1}
    EXEC 0xffffffff
    ds_write_b32 v{T+2}, v{UG}
    s_mov_b64 exec, -1
    """)
    A("STAMP8")
    CA0 = 140
    A(f"""
    v_subrev_u32 v{CA0+9}, 256, v0
    v_lshrrev_b32 v{CA0}, 7, v{CA0+9}
    v_and_b32 v{CA0+1}, 127, v{CA0+9}
    v_lshlrev_b32 v{CA0+2}, 10, v{CA0}
    v_lshl_add_u32 v{CA0+2}, v{CA0+1}, 3, v{CA0+2}
    v_lshlrev_b32 v{CA0+3}, 3, v{CA0}
    v_add_u32 v{CA0+4}, 65536, v{CA0+2}
    v_add_u32 v{CA0+5}, 65536, v{CA0+3}
    v_lshlrev_b32 v{CA0+6}, 4, v{CA0+9}
    v_lshlrev_b32 v{CA0+7}, 4, v{CA0}
    s_lshl_b32 s98, s2, 12
    s_add_u32 s98, s98, {WS_PART}
    s_lshl_b32 s99, s2, 5
    s_add_u32 s99, s99, {WS_ML}
    v_mov_b32 v65, v{R.TAGV}
    v_mov_b32 v67, v{R.TAGV}
    v_mov_b32 v69, v{R.TAGV}
    v_mov_b32 v71, v{R.TAGV}
    """)
    X0 = 152
    for i in range(8): A(f"v_mov_b32 v{X0+i}, 0")
    ST3 = f"{name}_pre3"; PREDONE = f"{name}_predone"
    A(f"""
    s_bfe_u32 s6, s2, 0x30003
    s_and_b32 s4, s2, 7
    s_lshr_b32 s5, s2, 6
    s_cmp_eq_u32 s6, 7
    s_cbranch_scc1 {ST3}
    """)
    A(f"""
    s_lshl_b32 s7, s3, 3
    s_add_u32 s7, s7, s4
    s_lshl_b32 s38, s7, 15
    s_lshl_b32 s39, s5, 10
    s_add_u32 s38, s38, s39
    s_add_u32 s38, s38, {WS_PART}
    s_lshl_b32 s39, s7, 8
    s_lshr_b32 s33, s5, 1
    s_lshl_b32 s33, s33, 4
    s_add_u32 s39, s39, s33
    s_add_u32 s39, s39, {WS_ML}
    v_lshlrev_b32 v{X0}, 4, v{L}
    v_and_b32 v{X0+1}, 7, v{L}
    v_lshlrev_b32 v{X0+1}, 5, v{X0+1}
    v_lshrrev_b32 v{X0+2}, 2, v{L}
    v_lshlrev_b32 v{X0+2}, 7, v{X0+2}
    v_and_b32 v{X0+3}, 3, v{L}
    v_lshl_add_u32 v{X0+2}, v{X0+3}, 3, v{X0+2}
    s_lshl_b32 s7, s3, 5
    s_add_u32 s7, s7, {L_STG}
    v_add_u32 v{X0+2}, s7, v{X0+2}
    v_mul_u32_u24 v{X0+3}, 384, v{X0+3}
    v_lshrrev_b32 v{X0+4}, 4, v{L}
    v_lshl_add_u32 v{X0+3}, v{X0+4}, 3, v{X0+3}
    v_add_u32 v{X0+3}, {L_OB}, v{X0+3}
    v_and_b32 v{X0+5}, 15, v{L}
    s_movk_i32 s7, 3584
    v_mul_lo_u32 v{X0+5}, v{X0+5}, s7
    v_lshl_add_u32 v{X0+5}, v{X0+4}, 5, v{X0+5}
    s_lshl_b32 s36, s4, 2
    s_add_u32 s36, s36, s5
    s_mul_i32 s36, s36, {4*448*8}
    s_lshl_b32 s7, s6, 9
    s_add_u32 s36, s36, s7
    s_lshl_b32 s7, s3, 7
    s_add_u32 s36, s36, s7
    s_add_u32 s36, s36, {WS_OUT2}
    s_mul_i32 s7, s3, 384
    s_add_u32 s7, s7, {L_OB}
    v_lshlrev_b32 v{X0+6}, 2, v{L}
    v_add_u32 v{X0+6}, s7, v{X0+6}
    s_mov_b32 s5, 0x000f000f
    s_branch {PREDONE}
    """)
    A(f"{ST3}:")
    A(f"""
    v_lshrrev_b32 v{X0}, 3, v{L}
    s_mov_b32 s7, {4*448*8}
    v_mul_lo_u32 v{X0}, v{X0}, s7
    v_and_b32 v{X0+1}, 7, v{L}
    v_lshl_add_u32 v{X0}, v{X0+1}, 4, v{X0}
    s_mul_i32 s37, s5, {448*8}
    s_lshl_b32 s7, s4, 9
    s_add_u32 s37, s37, s7
    s_lshl_b32 s7, s3, 7
    s_add_u32 s37, s37, s7
    s_add_u32 s37, s37, {WS_OUT2}
    s_mul_i32 s38, s5, 896
    s_lshl_b32 s7, s4, 7
    s_add_u32 s38, s38, s7
    s_lshl_b32 s7, s3, 5
    s_add_u32 s38, s38, s7
    v_lshlrev_b32 v{X0+2}, 2, v{X0+1}
    """)
    srd(A, S_X, P_X, P_X+1, 3584)
    srd(A, S_WA, P_OUT, P_OUT+1, 3584)
    A(f"buffer_load_dword v{X0+3}, v{X0+2}, s[{S_X}:{S_X+3}], s38 offen {Cfg.WL}")
    A(f"{PREDONE}:")
    A("s_waitcnt vmcnt(0) lgkmcnt(0)")
    A("s_barrier")
    A("STAMP9")
    for w in range(4):
        b = CA0+3 if w < 2 else CA0+5
        A(f"ds_read_b64 v[{52+2*w}:{53+2*w}], v{b} offset:{(w&1)*32768+2048}")
    for w in range(4):
        a = CA0+2 if w < 2 else CA0+4
        A(f"ds_read_b64 v[{44+2*w}:{45+2*w}], v{a} offset:{(w&1)*32768}")
    A("s_waitcnt lgkmcnt(4)")
    A("v_max3_f32 v60, v52, v54, v56")
    A("v_max_f32 v60, v60, v58")
    for w in range(4): A(f"v_sub_f32 v{52+2*w}, v{52+2*w}, v60")
    for w in range(4): A(f"v_exp_f32 v{52+2*w}, v{52+2*w}")
    A("v_mov_b32 v68, v60")
    A("s_waitcnt lgkmcnt(0)")
    A("v_mul_f32 v64, v44, v52"); A("v_mul_f32 v66, v45, v52"); A("v_mul_f32 v70, v53, v52")
    for w in range(1, 4):
        A(f"v_fmac_f32 v64, v{44+2*w}, v{52+2*w}")
        A(f"v_fmac_f32 v66, v{45+2*w}, v{52+2*w}")
        A(f"v_fmac_f32 v70, v{53+2*w}, v{52+2*w}")
    A(f"""
    buffer_store_dwordx4 v[64:67], v{CA0+6}, s[{S_WS}:{S_WS+3}], s98 offen {Cfg.ST}
    v_cmp_eq_u32 vcc, 0, v{CA0+1}
    s_and_saveexec_b64 s[92:93], vcc
    s_cbranch_execz {name}_noml
    buffer_store_dwordx4 v[68:71], v{CA0+7}, s[{S_WS}:{S_WS+3}], s99 offen {Cfg.ST}
    """)
    A(f"{name}_noml:")
    A("s_mov_b64 exec, -1")
    A("STAMP10")
    A(f"""
    s_cmp_eq_u32 s6, 7
    s_cbranch_scc1 {name}_stage3
    """)
    OG = 44; MG = 76; AW2 = 80
    def oloads():
        A(f"buffer_load_dwordx4 v[{MG}:{MG+3}], v{X0+1}, s[{S_WS}:{S_WS+3}], s39 offen {Cfg.LD}")
        for s_ in range(8):
            A(f"s_add_u32 s33, s38, {s_*4096}")
            A(f"buffer_load_dwordx4 v[{OG+4*s_}:{OG+4*s_+3}], v{X0}, s[{S_WS}:{S_WS+3}], s33 offen {Cfg.LD}")
    def pre2():
        for s_ in range(12):
            A(f"ds_read_b64_tr_b16 v[{AW2+2*s_}:{AW2+2*s_+1}], v{X0+2} offset:{s_*2048}")
    if Cfg.LIGHT:
        def mlload():
            A(f"buffer_load_dwordx4 v[{MG}:{MG+3}], v{X0+1}, s[{S_WS}:{S_WS+3}], s39 offen {Cfg.LD}")
        def oloads2():
            for s_ in range(8):
                A(f"s_add_u32 s33, s38, {s_*4096}")
                A(f"buffer_load_dwordx4 v[{OG+4*s_}:{OG+4*s_+3}], v{X0}, s[{S_WS}:{S_WS+3}], s33 offen {Cfg.LD}")
        poll_loop(A, "poll2a", mlload, [MG+1, MG+3], T+1, first_wait=0, between=pre2, sleep=Cfg.LIGHT)
        poll_loop(A, "poll2b", oloads2, [OG+4*s_+1 for s_ in range(8)] + [OG+4*s_+3 for s_ in range(8)], T+1)
    else:
        poll_loop(A, "poll2", oloads, [MG+1, MG+3] + [OG+4*s_+1 for s_ in range(8)] + [OG+4*s_+3 for s_ in range(8)], T+1, first_wait=0, between=pre2)
    A("STAMP11")
    A(f"v_mov_b32 v{T+3}, v{MG}")
    for r in (1, 2, 4):
        A("s_nop 1")
        A(f"v_max_f32_dpp v{T+3}, v{T+3}, v{T+3} row_ror:{r} row_mask:0xf bank_mask:0xf")
    A(f"v_sub_f32 v{T+4}, v{MG}, v{T+3}")
    A(f"v_exp_f32 v{T+4}, v{T+4}")
    A("s_nop 0")
    A(f"v_mul_f32 v{T+7}, v{T+4}, v{MG+2}")
    for r in (1, 2, 4):
        A("s_nop 1")
        A(f"v_add_f32_dpp v{T+7}, v{T+7}, v{T+7} row_ror:{r} row_mask:0xf bank_mask:0xf")
    A(f"v_rcp_f32 v{T+7}, v{T+7}")
    A("s_nop 0")
    A(f"v_mul_f32 v{T+4}, v{T+4}, v{T+7}")
    A("s_nop 0")
    for s_ in range(8):
        A(f"v_readlane_b32 s{40+s_}, v{T+4}, {s_}")
    A("s_nop 1")
    A(f"v_mul_f32 v{T+6}, s40, v{OG}")
    A(f"v_mul_f32 v{T+7}, s40, v{OG+2}")
    for s_ in range(1, 8):
        A(f"v_fmac_f32 v{T+6}, s{40+s_}, v{OG+4*s_}")
        A(f"v_fmac_f32 v{T+7}, s{40+s_}, v{OG+4*s_+2}")
    A(f"""
    v_cvt_pk_bf16_f32 v{T+6}, v{T+6}, v{T+7}
    ds_write_b32 v{X0+6}, v{T+6}
    s_waitcnt lgkmcnt(0)
    s_barrier
    """)
    for s_ in range(12):
        A(f"ds_read_b64 v[{104+2*s_}:{105+2*s_}], v{X0+3} offset:{s_*32}")
    G2 = 132
    A(f"v_mov_b32 v{G2+1}, v{R.TAGV}"); A(f"v_mov_b32 v{G2+3}, v{R.TAGV}"); A(f"v_mov_b32 v{G2+5}, v{R.TAGV}"); A(f"v_mov_b32 v{G2+7}, v{R.TAGV}")
    for s_ in range(12):
        A(f"s_waitcnt lgkmcnt({11-s_})")
        acc = 40 if s_ % 2 == 0 else 128
        A(f"v_mfma_f32_16x16x16_bf16 v[{acc}:{acc+3}], v[{AW2+2*s_}:{AW2+2*s_+1}], v[{104+2*s_}:{105+2*s_}], {'0' if s_<2 else f'v[{acc}:{acc+3}]'}")
    A(f"s_mov_b32 exec_lo, s5"); A(f"s_mov_b32 exec_hi, s5")
    A("s_nop 5")
    for i in range(4): A(f"v_add_f32 v{G2+2*i}, v{40+i}, v{128+i}")
    A(f"buffer_store_dwordx4 v[{G2}:{G2+3}], v{X0+5}, s[{S_WS}:{S_WS+3}], s36 offen {Cfg.ST}")
    A(f"buffer_store_dwordx4 v[{G2+4}:{G2+7}], v{X0+5}, s[{S_WS}:{S_WS+3}], s36 offen offset:16 {Cfg.ST}")
    A("s_mov_b64 exec, -1")
    A("STAMP12")
    if Asm.stamps: A("s_add_u32 s3, s3, 4")
    stamp_store(A, 13)
    A("s_endpgm")
    A(f"{name}_stage3:")
    A(f"""
    s_cmp_eq_u32 s4, 7
    s_cbranch_scc1 {name}_fin
    """)
    IG = 44
    def iloads():
        for i in range(4):
            A(f"s_add_u32 s33, s37, {i*8*4*448*8}")
            A(f"buffer_load_dwordx4 v[{IG+4*i}:{IG+4*i+3}], v{X0}, s[{S_WS}:{S_WS+3}], s33 offen {Cfg.LD}")
    poll_loop(A, "poll3", iloads, [IG+4*i+1 for i in range(4)] + [IG+4*i+3 for i in range(4)], T+4, sleep=Cfg.SLEEP3)
    A("STAMP11")
    for off in (0, 2):
        A(f"v_add_f32 v{IG+off}, v{IG+off}, v{IG+4+off}")
        A(f"v_add_f32 v{IG+8+off}, v{IG+8+off}, v{IG+12+off}")
    for off in (0, 2):
        A(f"v_add_f32 v{IG+off}, v{IG+off}, v{IG+8+off}")
    A("s_nop 0")
    for off in (0, 2):
        A(f"v_add_f32_dpp v{IG+off}, v{IG+off}, v{IG+off} row_ror:8 row_mask:0xf bank_mask:0xf")
    a, b, ta, tb = IG, IG+2, T+5, T+6
    A(f"v_mov_b32 v{ta}, v{a}"); A(f"v_mov_b32 v{tb}, v{b}"); A("s_nop 0")
    A(f"v_permlane16_swap_b32 v{ta}, v{a}"); A(f"v_permlane16_swap_b32 v{tb}, v{b}")
    A(f"v_add_f32 v{a}, v{a}, v{ta}"); A(f"v_add_f32 v{b}, v{b}, v{tb}")
    A(f"v_mov_b32 v{ta}, v{a}"); A(f"v_mov_b32 v{tb}, v{b}"); A("s_nop 0")
    A(f"v_permlane32_swap_b32 v{ta}, v{a}"); A(f"v_permlane32_swap_b32 v{tb}, v{b}")
    A(f"v_add_f32 v{a}, v{a}, v{ta}"); A(f"v_add_f32 v{b}, v{b}, v{tb}")
    A(f"""
    v_lshlrev_b32 v{T+4}, 16, v{X0+3}
    v_and_b32 v{T+5}, 0xffff0000, v{X0+3}
    v_add_f32 v{IG}, v{IG}, v{T+4}
    v_add_f32 v{IG+2}, v{IG+2}, v{T+5}
    v_cvt_pk_bf16_f32 v{IG}, v{IG}, v{IG+2}
    s_mov_b64 exec, 0xff
    buffer_store_dword v{IG}, v{X0+2}, s[{S_WA}:{S_WA+3}], s38 offen
    s_mov_b64 exec, -1
    s_cmp_eq_u32 s2, 56
    s_cbranch_scc0 {name}_fin
    s_cmp_eq_u32 s3, 0
    s_cbranch_scc0 {name}_fin
    v_mov_b32 v{T}, {WS_EPOCH}
    s_mov_b64 exec, 1
    buffer_store_dword v{R.TAGV}, v{T}, s[{S_WS}:{S_WS+3}], 0 offen sc1
    s_mov_b64 exec, -1
    """)
    A(f"{name}_fin:")
    A("STAMP12")
    if Asm.stamps: A("s_add_u32 s3, s3, 4")
    stamp_store(A, 13)
    A(f"{END}:")
    A("s_endpgm")
    return R.NV, 102

def gen(W=8, nt=True, stamps=False, S0=16, SPLITFFN=True, W0=8, KEARLY=0, QZEROFIRST=True, PAUSE=False, LIGHT=0, SLEEP3=0, HALF=False, SIX=False, WL='nt', LD='sc1', ST='sc1'):
    Cfg.W0 = W0; Cfg.KEARLY = KEARLY; Cfg.QZEROFIRST = QZEROFIRST; Cfg.PAUSE = PAUSE; Cfg.LIGHT = LIGHT; Cfg.SLEEP3 = SLEEP3; Cfg.HALF = HALF; Cfg.SIX = SIX
    Cfg.WL = WL; Cfg.LD = LD; Cfg.ST = ST
    Asm.stamps = stamps
    Cfg.W = W; Cfg.nt = nt; Cfg.S0 = S0; Cfg.SPLITFFN = SPLITFFN
    _lbl[0] = 0
    name = KN + "_kernel"
    body = Asm()
    nv, ns = gen_kernel(body, name)
    out = [f"; @launch grid=(256,1,1) block=(512,1,1) lds={LDS_BYTES}",
           '.amdgcn_target "amdgcn-amd-amdhsa--gfx950"', ".text", body.text(), '.section .rodata,"a"', kernel_desc(name, nv, ns)]
    return "\n".join(out) + "\n"

if __name__ == "__main__":
    import argparse
    ap = argparse.ArgumentParser()
    ap.add_argument("out"); ap.add_argument("--stamps", action="store_true"); ap.add_argument("--W", type=int, default=8); ap.add_argument("--S0", type=int, default=16)
    ap.add_argument("--nosplit", action="store_true"); ap.add_argument("--W0", type=int, default=8); ap.add_argument("--ke", type=int, default=0); ap.add_argument("--pause", action="store_true"); ap.add_argument("--half", action="store_true"); ap.add_argument("--six", action="store_true"); ap.add_argument("--light", type=int, default=0); ap.add_argument("--sleep3", type=int, default=0); ap.add_argument("--WL", default="nt"); ap.add_argument("--LD", default="sc1"); ap.add_argument("--ST", default="sc1")
    a = ap.parse_args()
    open(a.out, "w").write(gen(W=a.W, stamps=a.stamps, S0=a.S0, SPLITFFN=not a.nosplit, W0=a.W0, KEARLY=a.ke, PAUSE=a.pause, LIGHT=a.light, HALF=a.half, SIX=a.six, SLEEP3=a.sleep3, WL=a.WL, LD=a.LD, ST=a.ST))
    print("WS_STAMP", hex(WS_STAMP), "WS_SIZE", hex(WS_SIZE), "LDS", LDS_BYTES)
```

```python
from asmlib import *
import math, struct, sys
LOG2E = math.log2(math.e)
def f2u(x): return struct.unpack("<I", struct.pack("<f", x))[0]
def fhex(x): return f"0x{f2u(x):08x}"

WS_EPOCH = 0x0
WS_CNT  = 0x1000
WS_Q2   = 0x10000
WS_GU   = WS_Q2 + 16*4096*8
WS_PART = WS_GU + 2*16*1792*8
WS_ML   = WS_PART + 256*512*8
WS_OUT2 = WS_ML + 256*32
WS_STAMP = WS_OUT2 + 32*4*448*8
WS_SIZE = WS_STAMP + 2048*64
L_STG = 131072
L_QL  = L_STG + 28672
L_OB  = L_QL + 1024
L_XN  = L_OB + 1536
L_CNT = L_XN + 896
LDS_BYTES = L_CNT + 64

S_K, S_V, S_WS, S_WA, S_WB, S_X = 8, 12, 16, 20, 24, 28
P_X, P_K, P_V, P_WQ, P_WO, P_BX, P_G, P_U, P_WD, P_OUT, P_DBG, P_WS = 40, 42, 44, 46, 48, 50, 52, 54, 56, 58, 60, 62
S_EP, S_TAG = 64, 65
S_LB = 66
S_SC = 67
S_N2 = 68
S_MK = 69
S_R = 70
S_SPIN = 71
S_PB = 98
S_WI = 99
S_T = 32

class R:
    LANE = 1
    DMA = 2; KA = 10; VA = 14
    T = 22
    M = 32; L = 33; ALPHA = 34; MN = 35; P = 36
    TAGV = 38; IDX = 39; MASK = 38
    S = 40
    Q = 44
    KS = 76
    VS = 108
    O = 140
    UG = 204
    CA = 236
    WA = 238
    MASK2 = 237
    NV = 240

class Cfg:
    W = 8
    nt = True
    S0 = 16
    V0EARLY = 4

def round_bf16(A, v):
    A(f"v_cvt_pk_bf16_f32 v{v}, v{v}, v{v}")
    A(f"v_lshlrev_b32 v{v}, 16, v{v}")

def gelu(A, g, t0, t1):
    A(f"""
    v_mul_f32 v{t0}, v{g}, v{g}
    v_mul_f32 v{t0}, v{t0}, v{g}
    v_mov_b32 v{t1}, {fhex(0.044715)}
    v_fma_f32 v{t0}, v{t0}, v{t1}, v{g}
    v_mul_f32 v{t0}, {fhex(2*0.7978845608028654*LOG2E)}, v{t0}
    v_exp_f32 v{t0}, v{t0}
    s_nop 0
    v_add_f32 v{t0}, 1.0, v{t0}
    v_rcp_f32 v{t0}, v{t0}
    s_nop 0
    v_fma_f32 v{t0}, v{t0}, -2.0, 1.0
    v_add_f32 v{t0}, 1.0, v{t0}
    v_mul_f32 v{t1}, 0.5, v{g}
    v_mul_f32 v{g}, v{t1}, v{t0}
    """)
    round_bf16(A, g)

def main_addrs(A):
    L = R.LANE; T = R.T
    A(f"""
    v_and_b32 v{T}, 15, v{L}
    v_lshrrev_b32 v{T+1}, 5, v{L}
    v_lshlrev_b32 v{T+2}, 1, v{T+1}
    v_xor_b32 v{T}, v{T}, v{T+2}
    v_lshlrev_b32 v{T}, 4, v{T}
    v_lshlrev_b32 v{T+1}, 9, v{T+1}
    v_and_b32 v{T+2}, 16, v{L}
    v_lshl_add_u32 v{T+1}, v{T+2}, 4, v{T+1}
    v_add_u32 v{T}, v{T}, v{T+1}
    v_add_u32 v{T+1}, 4096, v{T}
    """)
    for p in range(8):
        const = (4*(p & 3)) | (p >> 2)
        src = T if p < 4 else T+1
        if const == 0: A(f"v_mov_b32 v{R.DMA+p}, v{src}")
        else: A(f"v_xor_b32 v{R.DMA+p}, {const << 4}, v{src}")

def read_addrs(A):
    L = R.LANE; T = R.T
    A(f"""
    v_and_b32 v{T}, 15, v{L}
    v_lshlrev_b32 v{T+1}, 1, v{T}
    v_and_b32 v{T+1}, 15, v{T+1}
    v_lshrrev_b32 v{T+2}, 3, v{T}
    v_or_b32 v{T+1}, v{T+1}, v{T+2}
    v_lshrrev_b32 v{T+2}, 4, v{L}
    v_lshlrev_b32 v{T+2}, 1, v{T+2}
    v_xor_b32 v{T+1}, v{T+1}, v{T+2}
    v_lshlrev_b32 v{T+1}, 4, v{T+1}
    v_lshlrev_b32 v{T}, 9, v{T}
    v_add3_u32 v{T}, s{S_LB}, v{T}, v{T+1}
    """)
    for k, m in enumerate((0, 1, 8, 9)):
        if m == 0: A(f"v_mov_b32 v{R.KA+k}, v{T}")
        else: A(f"v_xor_b32 v{R.KA+k}, {m << 4}, v{T}")
    A(f"""
    v_lshrrev_b32 v{T}, 2, v{L}
    v_lshlrev_b32 v{T+1}, 1, v{T}
    v_and_b32 v{T+1}, 15, v{T+1}
    v_lshrrev_b32 v{T+2}, 3, v{T}
    v_or_b32 v{T+1}, v{T+1}, v{T+2}
    v_bfe_u32 v{T+2}, v{L}, 1, 1
    v_xor_b32 v{T+1}, v{T+1}, v{T+2}
    v_lshlrev_b32 v{T+1}, 4, v{T+1}
    v_lshlrev_b32 v{T}, 9, v{T}
    v_and_b32 v{T+2}, 1, v{L}
    v_lshl_add_u32 v{T}, v{T+2}, 3, v{T}
    v_add3_u32 v{T}, s{S_LB}, v{T}, v{T+1}
    v_add_u32 v{T}, 8192, v{T}
    """)
    for k in range(8):
        if k == 0: A(f"v_mov_b32 v{R.VA+k}, v{T}")
        else: A(f"v_xor_b32 v{R.VA+k}, {(2*k) << 4}, v{T}")

def dma_piece(A, p, ldsbase_s, ldsoff, srd_s, soff, throttle=True, W=None):
    W = W or Cfg.W
    if throttle: A(f"s_waitcnt vmcnt({W-1})")
    if p % 4 == 0:
        A(f"s_add_u32 m0, s{ldsbase_s}, {ldsoff + (p//4)*4096}")
        A("s_nop 0")
    A(f"buffer_load_dwordx4 v{R.DMA+p}, s[{srd_s}:{srd_s+3}], s{soff} offen offset:{(p&3)*1024}{' nt' if Cfg.nt else ''} lds")

def iss(A, ldsbase_s, ldsoff, srd_s, soff, throttle=True, rng=range(8)):
    return [(lambda p=p: dma_piece(A, p, ldsbase_s, ldsoff, srd_s, soff, throttle)) for p in rng]

class Pts:
    def __init__(self, fs): self.it = iter(fs) if fs else None
    def __call__(self, n=1):
        for _ in range(n):
            if self.it is not None:
                f = next(self.it, None)
                if f: f()
    def flush(self):
        if self.it is not None:
            for f in self.it: f()

def k_tile(A, issue, pre=None, half=None):
    pt = Pts(issue)
    for s in range(8):
        A(f"ds_read_b128 v[{R.KS+4*s}:{R.KS+4*s+3}], v{R.KA+(s&3)} offset:{(s>>2)*256}")
    if pre: pre()
    for s in range(8):
        A(f"s_waitcnt lgkmcnt({7-s})")
        A(f"v_mfma_f32_16x16x32_bf16 v[{R.S}:{R.S+3}], v[{R.KS+4*s}:{R.KS+4*s+3}], v[{R.Q+4*s}:{R.Q+4*s+3}], {'0' if s==0 else f'v[{R.S}:{R.S+3}]'}")
    pt(2)
    for k in range(4): A(f"v_xor_b32 v{R.KA+k}, 0x4000, v{R.KA+k}")
    T = R.T; S = R.S
    A("s_nop 3")
    A(f"v_cvt_pk_bf16_f32 v{T}, v{S}, v{S+1}")
    A(f"v_cvt_pk_bf16_f32 v{T+1}, v{S+2}, v{S+3}")
    A(f"v_lshlrev_b32 v{S}, 16, v{T}")
    A(f"v_and_b32 v{S+1}, 0xffff0000, v{T}")
    A(f"v_lshlrev_b32 v{S+2}, 16, v{T+1}")
    A(f"v_and_b32 v{S+3}, 0xffff0000, v{T+1}")
    if Cfg.HALF:
        for i in range(4): A(f"v_fma_f32 v{S+i}, v{S+i}, s{S_SC}, v{R.MASK}")
    else:
        for i in range(4): A(f"v_mul_f32 v{S+i}, s{S_SC}, v{S+i}")
    A(f"v_max3_f32 v{R.MN}, v{S}, v{S+1}, v{S+2}")
    A(f"v_max3_f32 v{R.MN}, v{R.MN}, v{S+3}, v{R.M}")
    pt()
    xrow_reduce(A, "v_max_f32", R.MN, T)
    pt()
    A(f"v_sub_f32 v{R.ALPHA}, v{R.M}, v{R.MN}")
    for i in range(4): A(f"v_sub_f32 v{S+i}, v{S+i}, v{R.MN}")
    A(f"v_exp_f32 v{R.ALPHA}, v{R.ALPHA}")
    for i in range(4): A(f"v_exp_f32 v{S+i}, v{S+i}")
    A(f"v_mov_b32 v{R.M}, v{R.MN}")
    if not half: pt()
    A(f"v_add_f32 v{T}, v{S}, v{S+1}")
    A(f"v_add_f32 v{T+1}, v{S+2}, v{S+3}")
    A(f"v_cvt_pk_bf16_f32 v{R.P}, v{S}, v{S+1}")
    A(f"v_cvt_pk_bf16_f32 v{R.P+1}, v{S+2}, v{S+3}")
    A(f"v_add_f32 v{T}, v{T}, v{T+1}")
    A(f"v_fma_f32 v{R.L}, v{R.L}, v{R.ALPHA}, v{T}")
    if half and issue:
        lb = half()
        pt.flush()
        A(f"{lb}:")
    else:
        pt.flush()

_lbl = [0]
def newlabel(s):
    _lbl[0] += 1
    return f"L_{s}_{_lbl[0]}"

def v_tile(A, issue, half=None, first=False):
    def rd(B): A(f"ds_read_b64_tr_b16 v[{R.VS+2*B}:{R.VS+2*B+1}], v{R.VA+(B&7)} offset:{(B>>3)*256}")
    for B in range(8): rd(B)
    if not first:
        lb = newlabel("norescale")
        A(f"v_cmp_neq_f32 vcc, 1.0, v{R.ALPHA}")
        A(f"s_cbranch_vccz {lb}")
        for i in range(64): A(f"v_mul_f32 v{R.O+i}, v{R.O+i}, v{R.ALPHA}")
        A(f"{lb}:")
    A("s_nop 1")
    for B in range(16):
        A(f"s_waitcnt lgkmcnt({7 if B < 8 else 15-B})")
        cin = "0" if first else f"v[{R.O+4*B}:{R.O+4*B+3}]"
        A(f"v_mfma_f32_16x16x16_bf16 v[{R.O+4*B}:{R.O+4*B+3}], v[{R.VS+2*B}:{R.VS+2*B+1}], v[{R.P}:{R.P+1}], {cin}")
        if B < 8: rd(B+8)
    if first:
        for k in range(8): A(f"v_xor_b32 v{R.VA+k}, 0x4000, v{R.VA+k}")
    if issue:
        for f in issue[:4]: f()
        if half:
            lb2 = half()
            for f in issue[4:]: f()
            A(f"{lb2}:")
        else:
            for f in issue[4:]: f()
        for k in range(8): A(f"v_xor_b32 v{R.VA+k}, 0x4000, v{R.VA+k}")
    return

def v_toggle(A):
    for k in range(8): A(f"v_xor_b32 v{R.VA+k}, 0x4000, v{R.VA+k}")

def tagcheck(A, acc, regs):
    t1, t2 = R.T+8, R.T+9
    regs = list(regs); i = 0; first = True
    while i < len(regs):
        if first:
            A(f"v_xor_b32 v{acc}, v{regs[i]}, v{R.TAGV}"); i += 1; first = False
        elif i + 1 < len(regs):
            A(f"v_xor_b32 v{t1}, v{regs[i]}, v{R.TAGV}")
            A(f"v_xor_b32 v{t2}, v{regs[i+1]}, v{R.TAGV}")
            A(f"v_or3_b32 v{acc}, v{acc}, v{t1}, v{t2}")
            i += 2
        else:
            A(f"v_xor_b32 v{t1}, v{regs[i]}, v{R.TAGV}")
            A(f"v_or_b32 v{acc}, v{acc}, v{t1}")
            i += 1

def poll_loop(A, name, loads, tagregs, acc, first_wait=None, between=None, sleep=0):
    lp = newlabel(name); done = newlabel(name + "_done"); chk = newlabel(name + "_chk")
    A(f"s_mov_b32 s{S_SPIN}, 0x40000")
    if first_wait is not None:
        loads()
        if between: between()
        A(f"s_waitcnt vmcnt({first_wait})")
        A(f"s_branch {chk}")
    A(f"{lp}:")
    if sleep: A(f"s_sleep {sleep}")
    loads()
    A("s_waitcnt vmcnt(0)")
    A(f"{chk}:")
    tagcheck(A, acc, tagregs)
    A(f"v_cmp_ne_u32 vcc, 0, v{acc}")
    A(f"s_cbranch_vccz {done}")
    A(f"s_sub_u32 s{S_SPIN}, s{S_SPIN}, 1")
    A(f"s_cmp_lg_u32 s{S_SPIN}, 0")
    A(f"s_cbranch_scc1 {lp}")
    A(f"{done}:")

def pipe_poll(A, name, loads, tags, use, RA, RB, n, acc, psleep):
    lp = newlabel(name); da = newlabel(name + "_a"); db = newlabel(name + "_b"); done = newlabel(name + "_done")
    A(f"s_mov_b32 s{S_SPIN}, 0x40000")
    loads(RA)
    if psleep: A(f"s_sleep {psleep}")
    loads(RB)
    A(f"{lp}:")
    A(f"s_waitcnt vmcnt({n})")
    tagcheck(A, acc, tags(RA))
    A(f"v_cmp_ne_u32 vcc, 0, v{acc}")
    A(f"s_cbranch_vccz {da}")
    loads(RA)
    A(f"s_waitcnt vmcnt({n})")
    tagcheck(A, acc, tags(RB))
    A(f"v_cmp_ne_u32 vcc, 0, v{acc}")
    A(f"s_cbranch_vccz {db}")
    loads(RB)
    A(f"s_sub_u32 s{S_SPIN}, s{S_SPIN}, 1")
    A(f"s_cmp_lg_u32 s{S_SPIN}, 0")
    A(f"s_cbranch_scc1 {lp}")
    A(f"{da}:")
    use(RA)
    A(f"s_branch {done}")
    A(f"{db}:")
    use(RB)
    A(f"{done}:")

def stamp_store(A, n):
    if not Asm.stamps: return
    A(f"s_lshl_b32 s{S_T}, s2, 3"); A(f"s_add_u32 s{S_T}, s{S_T}, s3"); A(f"s_lshl_b32 s{S_T}, s{S_T}, 6"); A(f"s_add_u32 s{S_T}, s{S_T}, {WS_STAMP}")
    A("s_mov_b64 exec, 1")
    A("v_mov_b32 v2, 0")
    for i in range(n):
        A(f"v_mov_b32 v3, s{72+2*i}")
        A(f"buffer_store_dword v3, v2, s[{S_WS}:{S_WS+3}], s{S_T} offen offset:{4*i}")
    A("s_mov_b64 exec, -1")


def lds_arrive(A, off, vaddr, vone):
    A("s_mov_b64 exec, 1")
    A(f"ds_add_u32 v{vaddr}, v{vone} offset:{off}")
    A("s_mov_b64 exec, -1")

def lds_wait(A, off, target, vaddr, vtmp, sleep=0):
    lp = newlabel("ldswait"); done = newlabel("ldsdone")
    A(f"s_mov_b32 s{S_SPIN}, 0x400000")
    A(f"{lp}:")
    A(f"ds_read_b32 v{vtmp}, v{vaddr} offset:{off}")
    A("s_waitcnt lgkmcnt(0)")
    A(f"v_readfirstlane_b32 s{S_T}, v{vtmp}")
    A(f"s_cmp_ge_u32 s{S_T}, {target}")
    A(f"s_cbranch_scc1 {done}")
    if sleep: A(f"s_sleep {sleep}")
    A(f"s_sub_u32 s{S_SPIN}, s{S_SPIN}, 1")
    A(f"s_cmp_lg_u32 s{S_SPIN}, 0")
    A(f"s_cbranch_scc1 {lp}")
    A(f"{done}:")

def gen_kernel(A, name):
    kernel_header(A, name)
    T = R.T; L = R.LANE
    END = f"{name}_done"; AUX = f"{name}_aux"
    A(f"""
    s_cmp_ge_u32 s2, 256
    s_cbranch_scc1 {END}
    STAMP0
    s_load_dwordx16 s[40:55], s[0:1], 0
    s_load_dwordx8 s[56:63], s[0:1], 64
    v_and_b32 v{L}, 63, v0
    v_lshrrev_b32 v2, 6, v0
    s_nop 0
    v_readfirstlane_b32 s3, v2
    s_nop 3
    s_cmp_ge_u32 s3, 4
    s_cbranch_scc1 {AUX}
    """)
    main_addrs(A)
    A(f"""
    s_lshl_b32 s{S_LB}, s3, 15
    s_lshr_b32 s4, s2, 3
    s_lshl_b32 s{S_PB}, s4, 22
    s_and_b32 s5, s2, 7
    s_lshl_b32 s5, s5, 2
    s_add_u32 s{S_WI}, s5, s3
    s_lshl_b32 s5, s{S_WI}, 13
    s_add_u32 s{S_N2}, s{S_PB}, s5
    s_mov_b32 s{S_SC}, {fhex(0.0625*LOG2E)}
    s_mov_b32 s{S_MK}, s{S_LB}
    s_mov_b32 s{S_R}, 2
    s_waitcnt lgkmcnt(0)
    STAMP1
    """)
    srd(A, S_K, P_K, P_K+1, 128 << 20)
    srd(A, S_V, P_V, P_V+1, 128 << 20)
    srd(A, S_WS, P_WS, P_WS+1, WS_SIZE)
    read_addrs(A)
    A(f"v_mov_b32 v{R.M}, {fhex(-1e30)}")
    A(f"v_mov_b32 v{R.L}, 0")
    if Cfg.HALF:
        A(f"v_mov_b32 v{R.MASK}, 0")
        A(f"v_mov_b32 v{R.MASK2}, 0")
        A(f"v_mov_b32 v{T}, {fhex(-1e30)}")
        A(f"v_cmp_lt_u32 vcc, 31, v{L}")
        A("s_nop 1")
        A(f"v_cndmask_b32 v{R.MASK2}, v{R.MASK2}, v{T}, vcc")
    A(f"""
    v_and_b32 v{T+5}, 15, v{L}
    v_lshlrev_b32 v{T+5}, 9, v{T+5}
    v_lshrrev_b32 v{T+6}, 4, v{L}
    v_lshl_add_u32 v{T+5}, v{T+6}, 5, v{T+5}
    v_add_u32 v{T+5}, {L_QL}, v{T+5}
    v_mov_b32 v{T+7}, {L_CNT}
    """)
    if Cfg.S0 < 16:
        A(f"s_lshr_b32 s4, s2, 3"); A(f"s_lshl_b32 s4, s4, 8"); A(f"s_add_u32 s4, s4, {WS_CNT}"); A(f"v_mov_b32 v{R.CA}, s4")
    A("s_barrier")
    if not Cfg.SIX:
        for i in range(64): A(f"v_mov_b32 v{R.O+i}, 0")
    if Cfg.QZEROFIRST:
        for i in range(32): A(f"v_mov_b32 v{R.Q+i}, 0")
    for p in range(8): dma_piece(A, p, S_LB, 0, S_K, S_N2, throttle=(0 < Cfg.W0 <= p), W=Cfg.W0)
    A("STAMP2")
    if not Cfg.QZEROFIRST:
        for i in range(32): A(f"v_mov_b32 v{R.Q+i}, 0")
    if Cfg.PAUSE:
        lds_wait(A, 12, 4, T+7, T+8, sleep=1)
    thr = Cfg.W0 > 0
    for p in range(8): dma_piece(A, p, S_LB, 8192, S_V, S_N2, throttle=thr, W=Cfg.W0)
    A(f"s_add_u32 s{S_N2}, s{S_N2}, {32*8192}")
    for p in range(8): dma_piece(A, p, S_LB, 16384, S_K, S_N2, throttle=thr, W=Cfg.W0)
    for p in range(8): dma_piece(A, p, S_LB, 24576, S_V, S_N2, throttle=thr, W=Cfg.W0)
    A(f"s_add_u32 s{S_N2}, s{S_N2}, {32*8192}")
    def reg_piece(p, dst, srd_s):
        if thr: A(f"s_waitcnt vmcnt({Cfg.W0-1})")
        A(f"buffer_load_dwordx4 v[{dst+4*p}:{dst+4*p+3}], v{R.DMA+p}, s[{srd_s}:{srd_s+3}], s{S_N2} offen offset:{(p&3)*1024}{' nt' if Cfg.nt else ''}")
    if Cfg.SIX:
        for p in range(8): reg_piece(p, R.O, S_K)
        for p in range(8): reg_piece(p, R.UG, S_V)
        A(f"s_add_u32 s{S_N2}, s{S_N2}, {32*8192}")
        A(f"v_lshlrev_b32 v{R.WA}, 4, v{L}")
        A(f"v_add_u32 v{R.WA}, s{S_LB}, v{R.WA}")
    A("STAMP6")
    lds_wait(A, 4, 4, T+7, T+8, sleep=1)
    A("STAMP7")
    A("EXEC 0x0003000300030003")
    for s_ in range(8):
        A(f"ds_read_b128 v[{R.Q+4*s_}:{R.Q+4*s_+3}], v{T+5} offset:{(s_&1)*16 + (s_>>1)*128}")
    A("s_mov_b64 exec, -1")
    A("s_waitcnt lgkmcnt(0)")
    A("STAMP8")
    if Cfg.SIX:
        def k2write():
            A("s_waitcnt vmcnt(8)")
            for p in range(8):
                A(f"ds_write_b128 v{R.WA}, v[{R.O+4*p}:{R.O+4*p+3}] offset:{p*1024}")
        k_tile(A, [k2write])
        A("s_waitcnt lgkmcnt(0)")
        v_tile(A, None, first=True)
        A(f"s_xor_b32 s{S_MK}, s{S_MK}, 0x4000")
        A(f"s_mov_b32 s{S_R}, 3")
    LOOP = f"{name}_loop"
    A(f"{LOOP}:")
    def pre():
        if Cfg.S0 < 16:
            lb = newlabel("noatom")
            A(f"s_cmp_lt_u32 s{S_R}, {Cfg.S0 - 1}")
            A(f"s_cbranch_scc1 {lb}")
            A(f"v_mov_b32 v{R.IDX}, 1")
            A("s_mov_b64 exec, 1")
            A(f"buffer_atomic_add v{R.IDX}, v{R.CA}, s[{S_WS}:{S_WS+3}], 0 offen sc0 sc1")
            A("s_mov_b64 exec, -1")
            A(f"{lb}:")
    TW = 12 if Cfg.HALF else 24
    def halfskip():
        lb = newlabel("halfskip")
        A(f"s_cmp_ge_u32 s{S_R}, {Cfg.S0}")
        A(f"s_cbranch_scc1 {lb}")
        return lb
    hs = halfskip if Cfg.HALF else None
    if Cfg.HALF:
        lb = newlabel("nomask")
        A(f"s_cmp_eq_u32 s{S_R}, {Cfg.S0 + 2}")
        A(f"s_cbranch_scc0 {lb}")
        A(f"v_mov_b32 v{R.MASK}, v{R.MASK2}")
        A(f"{lb}:")
    A(f"s_waitcnt vmcnt({TW})")
    k_tile(A, iss(A, S_MK, 0, S_K, S_N2), pre=pre, half=hs)
    if Cfg.SIX:
        lb = newlabel("nov2")
        A(f"s_cmp_eq_u32 s{S_R}, 3")
        A(f"s_cbranch_scc0 {lb}")
        A("s_waitcnt vmcnt(8)")
        for p in range(8):
            A(f"ds_write_b128 v{R.WA}, v[{R.UG+4*p}:{R.UG+4*p+3}] offset:{8192 + p*1024}")
        A("s_waitcnt lgkmcnt(0)")
        A(f"{lb}:")
    A(f"s_waitcnt vmcnt({TW})")
    v_tile(A, iss(A, S_MK, 8192, S_V, S_N2), half=hs)
    A(f"s_xor_b32 s{S_MK}, s{S_MK}, 0x4000")
    A(f"s_add_u32 s{S_R}, s{S_R}, 1")
    if Cfg.S0 < 16:
        lb = newlabel("static"); lb2 = newlabel("idx")
        A(f"s_cmp_lt_u32 s{S_R}, {Cfg.S0}")
        A(f"s_cbranch_scc1 {lb}")
        A(f"s_waitcnt vmcnt({8 if Cfg.HALF else 16})")
        A(f"v_readfirstlane_b32 s4, v{R.IDX}")
        A(f"s_nop 0")
        if Cfg.HALF:
            A(f"s_lshl_b32 s5, s4, 12")
            A(f"s_add_u32 s5, s5, {Cfg.S0*32*8192}")
            A(f"s_add_u32 s{S_N2}, s{S_PB}, s5")
            A(f"s_cmp_lt_u32 s4, {(16-Cfg.S0)*64}")
            A(f"s_cbranch_scc1 {LOOP}")
            A(f"s_branch {name}_epi")
        else:
            A(f"s_add_u32 s4, s4, {Cfg.S0*32}")
            A(f"s_branch {lb2}")
        A(f"{lb}:")
        A(f"s_lshl_b32 s4, s{S_R}, 5")
        A(f"s_add_u32 s4, s4, s{S_WI}")
        A(f"{lb2}:")
    else:
        A(f"s_lshl_b32 s4, s{S_R}, 5")
        A(f"s_add_u32 s4, s4, s{S_WI}")
    A(f"s_lshl_b32 s5, s4, 13")
    A(f"s_add_u32 s{S_N2}, s{S_PB}, s5")
    A("s_cmp_lt_u32 s4, 512")
    A(f"s_cbranch_scc1 {LOOP}")
    A(f"{name}_epi:")
    def maskupd(delta):
        if Cfg.HALF:
            lb = newlabel("nomask")
            A(f"s_cmp_ge_u32 s{S_R}, {Cfg.S0 + 2 - delta}")
            A(f"s_cbranch_scc0 {lb}")
            A(f"v_mov_b32 v{R.MASK}, v{R.MASK2}")
            A(f"{lb}:")
    maskupd(0)
    A(f"s_waitcnt vmcnt({12 if Cfg.HALF else 24})")
    k_tile(A, None)
    A(f"s_waitcnt vmcnt({8 if Cfg.HALF else 16})")
    v_tile(A, None)
    v_toggle(A)
    maskupd(1)
    A(f"s_waitcnt vmcnt({4 if Cfg.HALF else 8})")
    k_tile(A, None)
    W0 = R.UG
    xrow_reduce(A, "v_add_f32", R.L, T)
    A(f"""
    v_and_b32 v{W0+2}, 15, v{L}
    v_lshlrev_b32 v{W0+2}, 3, v{W0+2}
    v_add_u32 v{W0+2}, s{S_LB}, v{W0+2}
    v_mov_b32 v{W0+4}, v{R.M}
    v_mov_b32 v{W0+5}, v{R.L}
    v_mov_b32 v{W0+6}, {L_CNT}
    v_mov_b32 v{W0+7}, 1
    s_mov_b64 exec, 3
    ds_write_b64 v{W0+2}, v[{W0+4}:{W0+5}] offset:2048
    s_mov_b64 exec, -1
    v_and_b32 v{W0+8}, 15, v{L}
    v_lshlrev_b32 v{W0}, 10, v{W0+8}
    v_lshrrev_b32 v{W0+1}, 4, v{L}
    v_lshl_add_u32 v{W0}, v{W0+1}, 4, v{W0}
    v_lshlrev_b32 v{W0+1}, 4, v{L}
    v_add_u32 v{W0+1}, 16384, v{W0+1}
    v_cmp_gt_u32 vcc, 2, v{W0+8}
    s_waitcnt lgkmcnt(0)
    v_cndmask_b32 v{W0}, v{W0+1}, v{W0}, vcc
    v_add_u32 v{W0}, s{S_LB}, v{W0}
    s_mov_b64 exec, 1
    ds_add_u32 v{W0+6}, v{W0+7} offset:16
    s_mov_b64 exec, -1
    s_waitcnt vmcnt(0)
    STAMP9
    """)
    def rd(B): A(f"ds_read_b64_tr_b16 v[{R.VS+2*B}:{R.VS+2*B+1}], v{R.VA+(B&7)} offset:{(B>>3)*256}")
    def wr(B): A(f"ds_write_b128 v{W0}, v[{R.O+4*B}:{R.O+4*B+3}] offset:{B*64}")
    if Asm.stamps: A("s_waitcnt lgkmcnt(0)")
    else: A("s_waitcnt lgkmcnt(0)")
    for B in range(12): rd(B)
    lb = newlabel("norescale")
    A(f"v_cmp_neq_f32 vcc, 1.0, v{R.ALPHA}")
    A(f"s_cbranch_vccz {lb}")
    for i in range(64): A(f"v_mul_f32 v{R.O+i}, v{R.O+i}, v{R.ALPHA}")
    A(f"{lb}:")
    A("s_nop 1")
    for B in range(16):
        A("s_waitcnt lgkmcnt(11)")
        A(f"v_mfma_f32_16x16x16_bf16 v[{R.O+4*B}:{R.O+4*B+3}], v[{R.VS+2*B}:{R.VS+2*B+1}], v[{R.P}:{R.P+1}], v[{R.O+4*B}:{R.O+4*B+3}]")
        if B < 4: rd(B+12)
        else: wr(B-4)
    wr(12); wr(13); A("s_nop 1"); wr(14); A("s_nop 1"); wr(15)
    A("s_waitcnt lgkmcnt(0)")
    A("s_barrier")
    A("STAMP10")
    if Asm.stamps:
        A("s_mov_b64 s[94:95], 0"); A("s_mov_b64 s[96:97], 0"); A("s_mov_b64 s[78:79], 0"); A("s_mov_b64 s[80:81], 0"); A("s_mov_b64 s[82:83], 0")
        stamp_store(A, 13)
    A("s_endpgm")

    A(f"{AUX}:")
    A("s_sub_u32 s3, s3, 4")
    A(f"""
    v_lshrrev_b32 v{T+4}, 3, v{L}
    v_and_b32 v{T+5}, 7, v{L}
    v_lshlrev_b32 v{T+5}, 4, v{T+5}
    v_lshl_add_u32 v{T+6}, v{T+4}, 13, v{T+5}
    s_movk_i32 s{S_T}, 3584
    v_mul_lo_u32 v{T+7}, v{T+4}, s{S_T}
    v_add_u32 v{T+7}, v{T+7}, v{T+5}
    v_lshlrev_b32 v{T+3}, 4, v{L}
    s_and_b32 s33, s2, 3
    s_lshr_b32 s34, s2, 2
    s_min_u32 s35, s34, 55
    s_cmp_ge_u32 s35, 28
    s_cselect_b32 s36, 28, 0
    s_cselect_b32 s37, 1, 0
    s_sub_u32 s35, s35, s36
    s_mul_i32 s38, s33, 112
    s_mul_i32 s39, s3, 28
    s_add_u32 s38, s38, s39
    s_lshl_b32 s4, s38, 13
    s_lshl_b32 s5, s34, 7
    s_add_u32 s4, s4, s5
    s_mul_i32 s6, s38, 3584
    s_lshl_b32 s5, s35, 7
    s_add_u32 s6, s6, s5
    s_mul_i32 s7, s3, {28*128}
    s_mul_i32 s39, s3, 896
    v_mov_b32 v44, 0
    v_mov_b32 v45, 0
    v_mov_b32 v46, 0
    v_mov_b32 v47, 0
    """)
    CN, ONE = R.CA, R.CA+1
    FV = R.UG + 30
    A(f"v_mov_b32 v{CN}, {L_CNT}")
    A(f"v_mov_b32 v{ONE}, 1")
    A(f"v_mov_b32 v{FV}, v{T+7}")
    lb = newlabel("nozero")
    A("s_cmp_eq_u32 s3, 0")
    A(f"s_cbranch_scc0 {lb}")
    A("s_mov_b64 exec, 1")
    A(f"ds_write_b64 v{CN}, v[44:45]")
    A(f"ds_write_b64 v{CN}, v[44:45] offset:8")
    A(f"ds_write_b64 v{CN}, v[44:45] offset:16")
    A("s_mov_b64 exec, -1")
    A(f"{lb}:")
    A(f"""
    s_waitcnt lgkmcnt(0)
    STAMP1
    s_load_dword s{S_EP}, s[{P_WS}:{P_WS+1}], {WS_EPOCH}
    """)
    srd(A, S_X, P_X, P_X+1, 3584)
    srd(A, S_WS, P_WS, P_WS+1, WS_SIZE)
    srd(A, S_WA, P_WQ, P_WQ+1, 448*4096*2)
    if Cfg.S0 < 16:
        lb = newlabel("noinit")
        A(f"""
        s_and_b32 s36, s2, 31
        s_cmp_lt_u32 s36, 4
        s_cbranch_scc0 {lb}
        s_cmp_eq_u32 s3, 0
        s_cbranch_scc0 {lb}
        s_lshl_b32 s36, s36, 3
        s_lshr_b32 s38, s2, 5
        s_add_u32 s36, s36, s38
        s_lshl_b32 s36, s36, 8
        s_add_u32 s36, s36, {WS_CNT}
        s_mov_b64 exec, 1
        buffer_store_dword v44, v44, s[{S_WS}:{S_WS+3}], s36 offen sc1
        s_mov_b64 exec, -1
        {lb}:
        """)
    A("EXEC 0x00ffffffffffffff")
    A(f"buffer_load_dwordx4 v[44:47], v{T+3}, s[{S_X}:{S_X+3}], s39 offen {Cfg.WL}")
    A("s_mov_b64 exec, -1")
    A("s_barrier")
    for j in range(4):
        A(f"s_add_u32 m0, s7, {L_STG + j*1024}")
        A("EXEC 0xffffffff" if j == 3 else "s_nop 0")
        A(f"buffer_load_dwordx4 v{T+6}, s[{S_WA}:{S_WA+3}], s4 offen {Cfg.WL} lds")
        if j < 3: A(f"s_add_u32 s4, s4, {8*8192}")
    A("s_mov_b64 exec, -1")
    A("STAMP2")
    A(f"s_cmp_eq_u32 s37, 0")
    A(f"s_cselect_b32 s{S_WB}, s{P_G}, s{P_U}")
    A(f"s_cselect_b32 s{S_WB+1}, s{P_G+1}, s{P_U+1}")
    A(f"s_and_b32 s{S_WB+1}, s{S_WB+1}, 0xffff")
    A(f"s_mov_b32 s{S_WB+2}, {448*1792*2}")
    A(f"s_mov_b32 s{S_WB+3}, 0x20000")
    AA, BA, QP, GP, XW = R.UG+24, R.UG+25, R.UG+26, R.UG+27, R.UG+28
    A(f"""
    v_lshrrev_b32 v{T}, 2, v{L}
    v_lshlrev_b32 v{T}, 7, v{T}
    v_and_b32 v{T+1}, 3, v{L}
    v_lshl_add_u32 v{T}, v{T+1}, 3, v{T}
    s_lshl_b32 s4, s3, 5
    s_add_u32 s4, s4, {L_STG}
    v_add_u32 v{AA}, s4, v{T}
    v_mul_u32_u24 v{T+1}, 224, v{T+1}
    v_lshrrev_b32 v{T+2}, 4, v{L}
    v_lshl_add_u32 v{T+1}, v{T+2}, 3, v{T+1}
    v_add_u32 v{BA}, {L_XN}, v{T+1}
    v_and_b32 v{T+4}, 15, v{L}
    v_lshlrev_b32 v{T+2}, 5, v{T+2}
    v_lshl_add_u32 v{QP}, v{T+4}, 15, v{T+2}
    s_movk_i32 s4, 14336
    v_mul_lo_u32 v{GP}, v{T+4}, s4
    v_add_u32 v{GP}, v{GP}, v{T+2}
    s_mul_i32 s4, s3, 224
    s_mul_i32 s5, s33, 224
    s_sub_u32 s4, s4, s5
    s_add_u32 s4, s4, {L_XN}
    v_add_u32 v{XW}, s4, v{T+3}
    s_mul_i32 s38, s33, 14
    s_lshl_b64 s[92:93], 0x3fff, s38
    s_lshl_b32 s5, s3, 7
    s_lshl_b32 s4, s34, 9
    s_add_u32 s4, s4, s5
    s_lshl_b32 s39, s33, 17
    s_add_u32 s4, s4, s39
    s_add_u32 s4, s4, {WS_Q2}
    s_lshl_b32 s36, s35, 9
    s_add_u32 s36, s36, s5
    s_mul_i32 s5, s37, {16*1792*8}
    s_add_u32 s36, s36, s5
    s_mul_i32 s5, s33, {4*1792*8}
    s_add_u32 s36, s36, s5
    s_add_u32 s36, s36, {WS_GU}
    s_mov_b32 s5, 0x000f000f
    s_waitcnt lgkmcnt(0)
    """)
    G = 92; F = 48
    A(f"""
    s_mul_i32 s{S_TAG}, s{S_EP}, 0x9E3779B1
    s_add_u32 s{S_TAG}, s{S_TAG}, 0x7F4A7C15
    v_mov_b32 v{R.TAGV}, s{S_TAG}
    v_mov_b32 v{G+1}, s{S_TAG}
    v_mov_b32 v{G+3}, s{S_TAG}
    v_mov_b32 v{G+5}, s{S_TAG}
    v_mov_b32 v{G+7}, s{S_TAG}
    s_waitcnt vmcnt(4)
    """)
    for i in range(4):
        A(f"v_lshlrev_b32 v{F+2*i}, 16, v{44+i}")
        A(f"v_and_b32 v{F+2*i+1}, 0xffff0000, v{44+i}")
    S0 = T; Q0 = T+4; D0 = T+8
    A(f"v_pk_add_f32 v[{S0}:{S0+1}], v[{F}:{F+1}], v[{F+2}:{F+3}]")
    A(f"v_pk_add_f32 v[{Q0}:{Q0+1}], v[{F+4}:{F+5}], v[{F+6}:{F+7}]")
    A(f"v_pk_add_f32 v[{S0}:{S0+1}], v[{S0}:{S0+1}], v[{Q0}:{Q0+1}]")
    A(f"v_add_f32 v{S0}, v{S0}, v{S0+1}")
    wave_reduce(A, "v_add_f32", S0, T+2)
    A(f"v_mul_f32 v{S0}, {fhex(1.0/448)}, v{S0}")
    A(f"v_mov_b32 v{Q0}, 0"); A(f"v_mov_b32 v{Q0+1}, 0")
    A(f"v_mov_b32 v{S0+1}, v{S0}")
    A("EXEC 0x00ffffffffffffff")
    for i in range(4):
        A(f"v_pk_add_f32 v[{D0}:{D0+1}], v[{F+2*i}:{F+2*i+1}], v[{S0}:{S0+1}] neg_lo:[0,1] neg_hi:[0,1]")
        A(f"v_pk_fma_f32 v[{Q0}:{Q0+1}], v[{D0}:{D0+1}], v[{D0}:{D0+1}], v[{Q0}:{Q0+1}]")
    A("s_mov_b64 exec, -1")
    A(f"v_add_f32 v{Q0}, v{Q0}, v{Q0+1}")
    wave_reduce(A, "v_add_f32", Q0, T+2)
    A(f"v_mul_f32 v{Q0}, {fhex(1.0/448)}, v{Q0}")
    round_bf16(A, Q0)
    A(f"v_add_f32 v{Q0}, {fhex(1e-5)}, v{Q0}")
    round_bf16(A, Q0)
    A(f"v_sqrt_f32 v{Q0}, v{Q0}")
    round_bf16(A, S0)
    round_bf16(A, Q0)
    A(f"v_mov_b32 v{S0+1}, v{S0}")
    A(f"v_rcp_f32 v{Q0}, v{Q0}")
    for i in range(4):
        A(f"v_pk_add_f32 v[{F+2*i}:{F+2*i+1}], v[{F+2*i}:{F+2*i+1}], v[{S0}:{S0+1}] neg_lo:[0,1] neg_hi:[0,1]")
    A(f"v_mov_b32 v{Q0+1}, v{Q0}")
    for i in range(4):
        A(f"v_cvt_pk_bf16_f32 v{44+i}, v{F+2*i}, v{F+2*i+1}")
    for i in range(4):
        A(f"v_lshlrev_b32 v{F+2*i}, 16, v{44+i}")
        A(f"v_and_b32 v{F+2*i+1}, 0xffff0000, v{44+i}")
    for i in range(4):
        A(f"v_pk_mul_f32 v[{F+2*i}:{F+2*i+1}], v[{F+2*i}:{F+2*i+1}], v[{Q0}:{Q0+1}]")
    for i in range(4):
        A(f"v_cvt_pk_bf16_f32 v{44+i}, v{F+2*i}, v{F+2*i+1}")
    A(f"""
    s_mov_b64 exec, s[92:93]
    ds_write_b128 v{XW}, v[44:47]
    s_mov_b64 exec, -1
    STAMP3
    s_waitcnt vmcnt(0) lgkmcnt(0)
    """)
    lds_arrive(A, 0, CN, ONE)
    lds_wait(A, 0, 4, CN, T+8)
    A("STAMP4")
    XV = 76; AW = 108; AW2 = 128; C1 = 40; C2 = 124
    for s_ in range(7):
        A(f"ds_read_b64 v[{XV+2*s_}:{XV+2*s_+1}], v{BA} offset:{s_*32}")
        A(f"ds_read_b64_tr_b16 v[{AW+2*s_}:{AW+2*s_+1}], v{AA} offset:{s_*2048}")
    for s_ in range(7):
        A(f"s_waitcnt lgkmcnt({12-2*s_})")
        A(f"v_mfma_f32_16x16x16_bf16 v[{C1}:{C1+3}], v[{AW+2*s_}:{AW+2*s_+1}], v[{XV+2*s_}:{XV+2*s_+1}], {'0' if s_==0 else f'v[{C1}:{C1+3}]'}")
    def publish(C, vaddr, soff):
        A(f"s_mov_b32 exec_lo, s5"); A(f"s_mov_b32 exec_hi, s5")
        A("s_nop 5")
        A(f"v_mov_b32 v{G}, v{C}"); A(f"v_mov_b32 v{G+2}, v{C+1}"); A(f"v_mov_b32 v{G+4}, v{C+2}"); A(f"v_mov_b32 v{G+6}, v{C+3}")
        A(f"buffer_store_dwordx4 v[{G}:{G+3}], v{vaddr}, s[{S_WS}:{S_WS+3}], s{soff} offen {Cfg.ST}")
        A(f"buffer_store_dwordx4 v[{G+4}:{G+7}], v{vaddr}, s[{S_WS}:{S_WS+3}], s{soff} offen offset:16 {Cfg.ST}")
        A("s_mov_b64 exec, -1")
    publish(C1, QP, 4)
    if Cfg.PAUSE: lds_arrive(A, 12, CN, ONE)
    A("STAMP5")
    for j in range(4):
        A(f"s_add_u32 m0, s7, {L_STG + 14336 + j*1024}")
        A("EXEC 0xffffffff" if j == 3 else "s_nop 0")
        A(f"buffer_load_dwordx4 v{FV}, s[{S_WB}:{S_WB+3}], s6 offen {Cfg.WL} lds")
        if j < 3: A(f"s_add_u32 s6, s6, {8*3584}")
    A("s_mov_b64 exec, -1")
    A("s_waitcnt vmcnt(0)")
    lds_arrive(A, 8, CN, ONE)
    lds_wait(A, 8, 4, CN, T+8)
    for s_ in range(7):
        A(f"ds_read_b64_tr_b16 v[{AW2+2*s_}:{AW2+2*s_+1}], v{AA} offset:{14336 + s_*2048}")
    for s_ in range(7):
        A(f"s_waitcnt lgkmcnt({6-s_})" if not Asm.stamps else "s_waitcnt lgkmcnt(0)")
        A(f"v_mfma_f32_16x16x16_bf16 v[{C2}:{C2+3}], v[{AW2+2*s_}:{AW2+2*s_+1}], v[{XV+2*s_}:{XV+2*s_+1}], {'0' if s_==0 else f'v[{C2}:{C2+3}]'}")
    lb = newlabel("noffn")
    A("s_cmp_ge_u32 s2, 224")
    A(f"s_cbranch_scc1 {lb}")
    publish(C2, GP, 36)
    A(f"{lb}:")
    A("STAMP6")
    QG = 44
    A(f"""
    s_lshr_b32 s4, s2, 6
    s_bfe_u32 s5, s2, 0x30003
    s_lshl_b32 s6, s4, 15
    s_lshl_b32 s7, s5, 12
    s_add_u32 s6, s6, s7
    s_lshl_b32 s7, s3, 10
    s_add_u32 s6, s6, s7
    s_add_u32 s6, s6, {WS_Q2}
    v_lshlrev_b32 v{T}, 4, v{L}
    v_lshlrev_b32 v{T+2}, 2, v{L}
    s_lshl_b32 s4, s3, 8
    s_add_u32 s4, s4, {L_QL}
    v_add_u32 v{T+2}, s4, v{T+2}
    """)
    def qloads():
        for kq in range(4):
            A(f"s_add_u32 s38, s6, {kq*131072}")
            A(f"buffer_load_dwordx4 v[{QG+4*kq}:{QG+4*kq+3}], v{T}, s[{S_WS}:{S_WS+3}], s38 offen {Cfg.LD}")
    poll_loop(A, "pollq", qloads, [QG+4*k+1 for k in range(4)] + [QG+4*k+3 for k in range(4)], T+1)
    A(f"""
    v_add_f32 v{QG}, v{QG}, v{QG+4}
    v_add_f32 v{QG+8}, v{QG+8}, v{QG+12}
    v_add_f32 v{QG+2}, v{QG+2}, v{QG+6}
    v_add_f32 v{QG+10}, v{QG+10}, v{QG+14}
    v_add_f32 v{QG}, v{QG}, v{QG+8}
    v_add_f32 v{QG+2}, v{QG+2}, v{QG+10}
    v_cvt_pk_bf16_f32 v{QG}, v{QG}, v{QG+2}
    ds_write_b32 v{T+2}, v{QG}
    s_waitcnt lgkmcnt(0)
    """)
    lds_arrive(A, 4, CN, ONE)
    A("STAMP7")
    UG = R.UG
    srd(A, S_WA, P_WO, P_WO+1, 4096*448*2)
    srd(A, S_WB, P_WD, P_WD+1, 1792*448*2)
    A(f"""
    v_lshrrev_b32 v{T+3}, 3, v{L}
    s_movk_i32 s4, 896
    v_mul_lo_u32 v{T+3}, v{T+3}, s4
    v_and_b32 v{T+4}, 7, v{L}
    v_lshl_add_u32 v{T+3}, v{T+4}, 4, v{T+3}
    s_and_b32 s4, s2, 7
    s_lshr_b32 s5, s2, 6
    s_bfe_u32 s6, s2, 0x30003
    s_min_u32 s6, s6, 6
    s_lshl_b32 s7, s4, 9
    s_lshl_b32 s38, s5, 7
    s_add_u32 s7, s7, s38
    s_lshl_b32 s38, s3, 5
    s_add_u32 s7, s7, s38
    s_mul_i32 s7, s7, 896
    s_lshl_b32 s6, s6, 7
    s_add_u32 s7, s7, s6
    s_lshl_b32 s38, s3, 12
    """)
    lds_wait(A, 4, 4, CN, T+8, sleep=1)
    for j in range(4):
        A(f"s_add_u32 m0, s38, {L_STG + j*1024}")
        A("s_nop 0")
        A(f"buffer_load_dwordx4 v{T+3}, s[{S_WA}:{S_WA+3}], s7 offen {Cfg.WL} lds")
        if j < 3: A(f"s_add_u32 s7, s7, {8*896}")
    A(f"""
    s_lshl_b32 s4, s4, 2
    s_add_u32 s4, s4, s5
    s_mul_i32 s33, s4, {56*8}
    s_mul_i32 s4, s4, 56
    s_lshl_b32 s5, s3, 4
    s_add_u32 s4, s4, s5
    s_mul_i32 s4, s4, 896
    s_add_u32 s4, s4, s6
    s_lshl_b32 s38, s3, 11
    """)
    for j in range(2):
        A(f"s_add_u32 m0, s38, {L_STG + 16384 + j*1024}")
        A("s_nop 0")
        A(f"buffer_load_dwordx4 v{T+3}, s[{S_WB}:{S_WB+3}], s4 offen {Cfg.WL} lds")
        if j < 1: A(f"s_add_u32 s4, s4, {8*896}")
    A(f"""
    s_mul_i32 s38, s3, {1792*8}
    s_add_u32 s33, s33, s38
    s_add_u32 s33, s33, {WS_GU}
    v_lshlrev_b32 v{T}, 4, v{L}
    """)
    for i in range(8):
        A(f"v_mov_b32 v{UG+4*i+1}, v{R.TAGV}"); A(f"v_mov_b32 v{UG+4*i+3}, v{R.TAGV}")
        A(f"v_mov_b32 v{UG+4*i}, 0"); A(f"v_mov_b32 v{UG+4*i+2}, 0")
    def guloads():
        A("EXEC 0x0fffffff")
        for i in range(8):
            A(f"s_add_u32 s38, s33, {(i>>2)*16*1792*8 + (i&3)*4*1792*8}")
            A(f"buffer_load_dwordx4 v[{UG+4*i}:{UG+4*i+3}], v{T}, s[{S_WS}:{S_WS+3}], s38 offen {Cfg.LD}")
        A("s_mov_b64 exec, -1")
    poll_loop(A, "pollgu", guloads, [UG+4*i+1 for i in range(8)] + [UG+4*i+3 for i in range(8)], T+1)
    for base, off in ((UG, 0), (UG, 2), (UG+16, 0), (UG+16, 2)):
        A(f"v_add_f32 v{base+off}, v{base+off}, v{base+4+off}")
        A(f"v_add_f32 v{base+8+off}, v{base+8+off}, v{base+12+off}")
        A(f"v_add_f32 v{base+off}, v{base+off}, v{base+8+off}")
        round_bf16(A, base+off)
    gelu(A, UG, T+4, T+5)
    gelu(A, UG+2, T+4, T+5)
    A(f"""
    v_mul_f32 v{UG}, v{UG}, v{UG+16}
    v_mul_f32 v{UG+2}, v{UG+2}, v{UG+18}
    v_cvt_pk_bf16_f32 v{UG}, v{UG}, v{UG+2}
    s_mul_i32 s4, s3, 384
    s_add_u32 s4, s4, {L_OB+256}
    v_lshlrev_b32 v{T+1}, 2, v{L}
    v_add_u32 v{T+2}, s4, v{T+1}
    EXEC 0xffffffff
    ds_write_b32 v{T+2}, v{UG}
    s_mov_b64 exec, -1
    """)
    A("STAMP8")
    CA0 = 140
    A(f"""
    v_subrev_u32 v{CA0+9}, 256, v0
    v_lshrrev_b32 v{CA0}, 7, v{CA0+9}
    v_and_b32 v{CA0+1}, 127, v{CA0+9}
    v_lshlrev_b32 v{CA0+2}, 10, v{CA0}
    v_lshl_add_u32 v{CA0+2}, v{CA0+1}, 3, v{CA0+2}
    v_lshlrev_b32 v{CA0+3}, 3, v{CA0}
    v_add_u32 v{CA0+4}, 65536, v{CA0+2}
    v_add_u32 v{CA0+5}, 65536, v{CA0+3}
    v_lshlrev_b32 v{CA0+6}, {3 if Cfg.PACK else 4}, v{CA0+9}
    v_lshlrev_b32 v{CA0+7}, 4, v{CA0}
    s_lshl_b32 s98, s2, {11 if Cfg.PACK else 12}
    s_add_u32 s98, s98, {WS_PART}
    s_lshl_b32 s99, s2, 5
    s_add_u32 s99, s99, {WS_ML}
    v_mov_b32 v65, v{R.TAGV}
    v_mov_b32 v67, v{R.TAGV}
    v_mov_b32 v69, v{R.TAGV}
    v_mov_b32 v71, v{R.TAGV}
    """)
    X0 = 152
    for i in range(8): A(f"v_mov_b32 v{X0+i}, 0")
    ST3 = f"{name}_pre3"; PREDONE = f"{name}_predone"
    A(f"""
    s_bfe_u32 s6, s2, 0x30003
    s_and_b32 s4, s2, 7
    s_lshr_b32 s5, s2, 6
    s_cmp_eq_u32 s6, 7
    s_cbranch_scc1 {ST3}
    """)
    A(f"""
    s_lshl_b32 s7, s3, 3
    s_add_u32 s7, s7, s4
    s_lshl_b32 s38, s7, {14 if Cfg.PACK else 15}
    s_lshl_b32 s39, s5, {9 if Cfg.PACK else 10}
    s_add_u32 s38, s38, s39
    s_add_u32 s38, s38, {WS_PART}
    s_lshl_b32 s39, s7, 8
    s_lshr_b32 s33, s5, 1
    s_lshl_b32 s33, s33, 4
    s_add_u32 s39, s39, s33
    s_add_u32 s39, s39, {WS_ML}
    v_and_b32 v{X0}, 31, v{L}
    v_lshlrev_b32 v{X0}, 4, v{X0}
    v_lshrrev_b32 v{X0+1}, 5, v{L}
    v_lshl_add_u32 v{X0}, v{X0+1}, 13, v{X0}
    v_and_b32 v{X0+1}, 7, v{L}
    v_lshlrev_b32 v{X0+1}, 5, v{X0+1}
    v_lshrrev_b32 v{X0+2}, 2, v{L}
    v_lshlrev_b32 v{X0+2}, 7, v{X0+2}
    v_and_b32 v{X0+3}, 3, v{L}
    v_lshl_add_u32 v{X0+2}, v{X0+3}, 3, v{X0+2}
    s_lshl_b32 s7, s3, 5
    s_add_u32 s7, s7, {L_STG}
    v_add_u32 v{X0+2}, s7, v{X0+2}
    v_mul_u32_u24 v{X0+3}, 384, v{X0+3}
    v_lshrrev_b32 v{X0+4}, 4, v{L}
    v_lshl_add_u32 v{X0+3}, v{X0+4}, 3, v{X0+3}
    v_add_u32 v{X0+3}, {L_OB}, v{X0+3}
    v_and_b32 v{X0+5}, 15, v{L}
    s_movk_i32 s7, 3584
    v_mul_lo_u32 v{X0+5}, v{X0+5}, s7
    v_lshl_add_u32 v{X0+5}, v{X0+4}, 5, v{X0+5}
    s_lshl_b32 s36, s4, 2
    s_add_u32 s36, s36, s5
    s_mul_i32 s36, s36, {4*448*8}
    s_lshl_b32 s7, s6, 9
    s_add_u32 s36, s36, s7
    s_lshl_b32 s7, s3, 7
    s_add_u32 s36, s36, s7
    s_add_u32 s36, s36, {WS_OUT2}
    s_mul_i32 s7, s3, 384
    s_add_u32 s7, s7, {L_OB}
    v_and_b32 v{X0+6}, 31, v{L}
    v_lshlrev_b32 v{X0+6}, 3, v{X0+6}
    v_add_u32 v{X0+6}, s7, v{X0+6}
    s_mov_b32 s5, 0x000f000f
    s_branch {PREDONE}
    """)
    A(f"{ST3}:")
    A(f"""
    v_lshrrev_b32 v{X0}, 3, v{L}
    s_mov_b32 s7, {4*448*8}
    v_mul_lo_u32 v{X0}, v{X0}, s7
    v_and_b32 v{X0+1}, 7, v{L}
    v_lshl_add_u32 v{X0}, v{X0+1}, 4, v{X0}
    s_mul_i32 s37, s5, {448*8}
    s_lshl_b32 s7, s4, 9
    s_add_u32 s37, s37, s7
    s_lshl_b32 s7, s3, 7
    s_add_u32 s37, s37, s7
    s_add_u32 s37, s37, {WS_OUT2}
    s_mul_i32 s38, s5, 896
    s_lshl_b32 s7, s4, 7
    s_add_u32 s38, s38, s7
    s_lshl_b32 s7, s3, 5
    s_add_u32 s38, s38, s7
    v_lshlrev_b32 v{X0+2}, 2, v{X0+1}
    """)
    srd(A, S_X, P_X, P_X+1, 3584)
    srd(A, S_WA, P_OUT, P_OUT+1, 3584)
    A(f"buffer_load_dword v{X0+3}, v{X0+2}, s[{S_X}:{S_X+3}], s38 offen {Cfg.WL}")
    A(f"{PREDONE}:")
    A("s_waitcnt vmcnt(0) lgkmcnt(0)")
    lds_wait(A, 16, 4, CN, T+8, sleep=4)
    for w in range(4):
        b = CA0+3 if w < 2 else CA0+5
        A(f"ds_read_b64 v[{52+2*w}:{53+2*w}], v{b} offset:{(w&1)*32768+2048}")
    A("s_waitcnt lgkmcnt(0)")
    A("v_max3_f32 v60, v52, v54, v56")
    A("v_max_f32 v60, v60, v58")
    for w in range(4): A(f"v_sub_f32 v{52+2*w}, v{52+2*w}, v60")
    for w in range(4): A(f"v_exp_f32 v{52+2*w}, v{52+2*w}")
    A("v_mov_b32 v68, v60")
    A("v_mul_f32 v70, v53, v52")
    for w in range(1, 4): A(f"v_fmac_f32 v70, v{53+2*w}, v{52+2*w}")
    A(f"""
    v_cmp_eq_u32 vcc, 0, v{CA0+1}
    s_and_saveexec_b64 s[92:93], vcc
    s_cbranch_execz {name}_noml
    buffer_store_dwordx4 v[68:71], v{CA0+7}, s[{S_WS}:{S_WS+3}], s99 offen {Cfg.ST}
    """)
    A(f"{name}_noml:")
    A("s_mov_b64 exec, -1")
    A("s_barrier")
    A("STAMP9")
    for w in range(4):
        a = CA0+2 if w < 2 else CA0+4
        A(f"ds_read_b64 v[{44+2*w}:{45+2*w}], v{a} offset:{(w&1)*32768}")
    A("s_waitcnt lgkmcnt(3)")
    A("v_mul_f32 v64, v44, v52"); A("v_mul_f32 v66, v45, v52")
    for w in range(1, 4):
        A(f"s_waitcnt lgkmcnt({3-w})")
        A(f"v_fmac_f32 v64, v{44+2*w}, v{52+2*w}")
        A(f"v_fmac_f32 v66, v{45+2*w}, v{52+2*w}")
    if Cfg.PACK:
        A("v_cvt_pk_bf16_f32 v64, v64, v66")
        A(f"buffer_store_dwordx2 v[64:65], v{CA0+6}, s[{S_WS}:{S_WS+3}], s98 offen {Cfg.ST}")
    else:
        A(f"buffer_store_dwordx4 v[64:67], v{CA0+6}, s[{S_WS}:{S_WS+3}], s98 offen {Cfg.ST}")
    A("STAMP10")
    A(f"""
    s_cmp_eq_u32 s6, 7
    s_cbranch_scc1 {name}_stage3
    """)
    OG = 44; MG = 76; AW2 = 80
    def oloads():
        A(f"buffer_load_dwordx4 v[{MG}:{MG+3}], v{X0+1}, s[{S_WS}:{S_WS+3}], s39 offen {Cfg.LD}")
        for s_ in range(8):
            A(f"s_add_u32 s33, s38, {s_*4096}")
            A(f"buffer_load_dwordx4 v[{OG+4*s_}:{OG+4*s_+3}], v{X0}, s[{S_WS}:{S_WS+3}], s33 offen {Cfg.LD}")
    def pre2():
        for s_ in range(12):
            A(f"ds_read_b64_tr_b16 v[{AW2+2*s_}:{AW2+2*s_+1}], v{X0+2} offset:{s_*2048}")
    def mlload():
        A(f"buffer_load_dwordx4 v[{MG}:{MG+3}], v{X0+1}, s[{S_WS}:{S_WS+3}], s39 offen {Cfg.LD}")
    poll_loop(A, "poll2a", mlload, [MG+1, MG+3], T+1, first_wait=0, between=pre2, sleep=2)
    A(f"v_mov_b32 v{T+3}, v{MG}")
    for r in (1, 2, 4):
        A("s_nop 1")
        A(f"v_max_f32_dpp v{T+3}, v{T+3}, v{T+3} row_ror:{r} row_mask:0xf bank_mask:0xf")
    A(f"v_sub_f32 v{T+4}, v{MG}, v{T+3}")
    A(f"v_exp_f32 v{T+4}, v{T+4}")
    A("s_nop 0")
    A(f"v_mul_f32 v{T+7}, v{T+4}, v{MG+2}")
    for r in (1, 2, 4):
        A("s_nop 1")
        A(f"v_add_f32_dpp v{T+7}, v{T+7}, v{T+7} row_ror:{r} row_mask:0xf bank_mask:0xf")
    A(f"v_rcp_f32 v{T+7}, v{T+7}")
    A("s_nop 0")
    A(f"v_mul_f32 v{T+4}, v{T+4}, v{T+7}")
    A("s_nop 0")
    for s_ in range(8):
        A(f"v_readlane_b32 s{40+s_}, v{T+4}, {s_}")
    assert Cfg.PACK
    WV = 160
    A("s_nop 1")
    for i in range(4): A(f"v_mov_b32 v{WV+i}, s{40+i}")
    A("s_mov_b32 exec_lo, 0")
    for i in range(4): A(f"v_mov_b32 v{WV+i}, s{44+i}")
    A("s_mov_b32 exec_lo, -1")
    def ol():
        for i in range(4):
            A(f"buffer_load_dwordx4 v[{OG+4*i}:{OG+4*i+3}], v{X0}, s[{S_WS}:{S_WS+3}], s38 offen offset:{(i&1)*2048} {Cfg.LD}" if i < 2 else
              f"buffer_load_dwordx4 v[{OG+4*i}:{OG+4*i+3}], v{X0}, s[{S_WS}:{S_WS+3}], s33 offen offset:{(i&1)*2048} {Cfg.LD}")
    A("s_add_u32 s33, s38, 4096")
    poll_loop(A, "poll2b", ol, [OG+4*i+1 for i in range(4)] + [OG+4*i+3 for i in range(4)], T+1)
    AC = 64
    for i in range(4):
        A(f"v_lshlrev_b32 v{T+2}, 16, v{OG+4*i}")
        A(f"v_and_b32 v{T+3}, 0xffff0000, v{OG+4*i}")
        A(f"v_lshlrev_b32 v{T+4}, 16, v{OG+4*i+2}")
        A(f"v_and_b32 v{T+5}, 0xffff0000, v{OG+4*i+2}")
        for k in range(4):
            if i == 0: A(f"v_mul_f32 v{AC+k}, v{WV}, v{T+2+k}")
            else: A(f"v_fmac_f32 v{AC+k}, v{WV+i}, v{T+2+k}")
    for k in range(4): A(f"v_mov_b32 v{AC+4+k}, v{AC+k}")
    A("s_nop 0")
    for k in range(4): A(f"v_permlane32_swap_b32 v{AC+4+k}, v{AC+k}")
    for k in range(4): A(f"v_add_f32 v{AC+k}, v{AC+k}, v{AC+4+k}")
    A(f"v_cvt_pk_bf16_f32 v{AC}, v{AC}, v{AC+1}")
    A(f"v_cvt_pk_bf16_f32 v{AC+1}, v{AC+2}, v{AC+3}")
    A("STAMP11")
    A(f"""
    s_mov_b32 exec_hi, 0
    ds_write_b64 v{X0+6}, v[64:65]
    s_mov_b32 exec_hi, -1
    s_waitcnt lgkmcnt(0)
    s_barrier
    """)
    for s_ in range(12):
        A(f"ds_read_b64 v[{104+2*s_}:{105+2*s_}], v{X0+3} offset:{s_*32}")
    G2 = 132
    A(f"v_mov_b32 v{G2+1}, v{R.TAGV}"); A(f"v_mov_b32 v{G2+3}, v{R.TAGV}"); A(f"v_mov_b32 v{G2+5}, v{R.TAGV}"); A(f"v_mov_b32 v{G2+7}, v{R.TAGV}")
    for s_ in range(12):
        A(f"s_waitcnt lgkmcnt({11-s_})")
        acc = 40 if s_ % 2 == 0 else 128
        A(f"v_mfma_f32_16x16x16_bf16 v[{acc}:{acc+3}], v[{AW2+2*s_}:{AW2+2*s_+1}], v[{104+2*s_}:{105+2*s_}], {'0' if s_<2 else f'v[{acc}:{acc+3}]'}")
    A(f"s_mov_b32 exec_lo, s5"); A(f"s_mov_b32 exec_hi, s5")
    A("s_nop 5")
    for i in range(4): A(f"v_add_f32 v{G2+2*i}, v{40+i}, v{128+i}")
    A(f"buffer_store_dwordx4 v[{G2}:{G2+3}], v{X0+5}, s[{S_WS}:{S_WS+3}], s36 offen {Cfg.ST}")
    A(f"buffer_store_dwordx4 v[{G2+4}:{G2+7}], v{X0+5}, s[{S_WS}:{S_WS+3}], s36 offen offset:16 {Cfg.ST}")
    A("s_mov_b64 exec, -1")
    A("STAMP12")
    if Asm.stamps: A("s_add_u32 s3, s3, 4")
    stamp_store(A, 13)
    A("s_endpgm")
    A(f"{name}_stage3:")
    A(f"""
    s_cmp_eq_u32 s4, 7
    s_cbranch_scc1 {name}_fin
    """)
    IG = 44
    IGB = 60
    def il(base):
        for i in range(4):
            A(f"s_add_u32 s33, s37, {i*8*4*448*8}")
            A(f"buffer_load_dwordx4 v[{base+4*i}:{base+4*i+3}], v{X0}, s[{S_WS}:{S_WS+3}], s33 offen {Cfg.LD}")
    def itags(base): return [base+4*i+1 for i in range(4)] + [base+4*i+3 for i in range(4)]
    SUM = 80
    def isum(base):
        for off in (0, 2):
            A(f"v_add_f32 v{SUM+off}, v{base+off}, v{base+4+off}")
            A(f"v_add_f32 v{SUM+1+off}, v{base+8+off}, v{base+12+off}")
        for off in (0, 2):
            A(f"v_add_f32 v{SUM+off}, v{SUM+off}, v{SUM+1+off}")
    if Cfg.PIPE3:
        pipe_poll(A, "poll3", il, itags, isum, IG, IGB, 4, T+4, Cfg.PSLEEP)
    else:
        poll_loop(A, "poll3", lambda: il(IG), itags(IG), T+4, sleep=Cfg.SLEEP3)
        isum(IG)
    A("STAMP11")
    IG = SUM
    A("s_nop 0")
    for off in (0, 2):
        A(f"v_add_f32_dpp v{IG+off}, v{IG+off}, v{IG+off} row_ror:8 row_mask:0xf bank_mask:0xf")
    a, b, ta, tb = IG, IG+2, T+5, T+6
    A(f"v_mov_b32 v{ta}, v{a}"); A(f"v_mov_b32 v{tb}, v{b}"); A("s_nop 0")
    A(f"v_permlane16_swap_b32 v{ta}, v{a}"); A(f"v_permlane16_swap_b32 v{tb}, v{b}")
    A(f"v_add_f32 v{a}, v{a}, v{ta}"); A(f"v_add_f32 v{b}, v{b}, v{tb}")
    A(f"v_mov_b32 v{ta}, v{a}"); A(f"v_mov_b32 v{tb}, v{b}"); A("s_nop 0")
    A(f"v_permlane32_swap_b32 v{ta}, v{a}"); A(f"v_permlane32_swap_b32 v{tb}, v{b}")
    A(f"v_add_f32 v{a}, v{a}, v{ta}"); A(f"v_add_f32 v{b}, v{b}, v{tb}")
    A(f"""
    v_lshlrev_b32 v{T+4}, 16, v{X0+3}
    v_and_b32 v{T+5}, 0xffff0000, v{X0+3}
    v_add_f32 v{IG}, v{IG}, v{T+4}
    v_add_f32 v{IG+2}, v{IG+2}, v{T+5}
    v_cvt_pk_bf16_f32 v{IG}, v{IG}, v{IG+2}
    s_mov_b64 exec, 0xff
    buffer_store_dword v{IG}, v{X0+2}, s[{S_WA}:{S_WA+3}], s38 offen
    s_mov_b64 exec, -1
    s_cmp_eq_u32 s2, 56
    s_cbranch_scc0 {name}_fin
    s_cmp_eq_u32 s3, 0
    s_cbranch_scc0 {name}_fin
    v_mov_b32 v{T}, {WS_EPOCH}
    s_mov_b64 exec, 1
    buffer_store_dword v{R.TAGV}, v{T}, s[{S_WS}:{S_WS+3}], 0 offen sc1
    s_mov_b64 exec, -1
    """)
    A(f"{name}_fin:")
    A("STAMP12")
    if Asm.stamps: A("s_add_u32 s3, s3, 4")
    stamp_store(A, 13)
    A(f"{END}:")
    A("s_endpgm")
    return R.NV, 102

def gen(W=8, nt=True, stamps=False, S0=16, SPLITFFN=True, W0=8, KEARLY=0, QZEROFIRST=True, PAUSE=False, LIGHT=0, SLEEP3=0, HALF=False, SIX=False, PSLEEP=3, PACK=True, PIPE2=False, PIPE3=True, WL='nt', LD='sc1', ST='sc1'):
    Cfg.W0 = W0; Cfg.KEARLY = KEARLY; Cfg.QZEROFIRST = QZEROFIRST; Cfg.PAUSE = PAUSE; Cfg.LIGHT = LIGHT; Cfg.SLEEP3 = SLEEP3; Cfg.HALF = HALF; Cfg.SIX = SIX; Cfg.PSLEEP = PSLEEP; Cfg.PACK = PACK; Cfg.PIPE2 = PIPE2; Cfg.PIPE3 = PIPE3
    Cfg.WL = WL; Cfg.LD = LD; Cfg.ST = ST
    Asm.stamps = stamps
    Cfg.W = W; Cfg.nt = nt; Cfg.S0 = S0; Cfg.SPLITFFN = SPLITFFN
    _lbl[0] = 0
    name = KN + "_kernel"
    body = Asm()
    nv, ns = gen_kernel(body, name)
    out = [f"; @launch grid=(256,1,1) block=(512,1,1) lds={LDS_BYTES}",
           '.amdgcn_target "amdgcn-amd-amdhsa--gfx950"', ".text", body.text(), '.section .rodata,"a"', kernel_desc(name, nv, ns)]
    return "\n".join(out) + "\n"

if __name__ == "__main__":
    import argparse
    ap = argparse.ArgumentParser()
    ap.add_argument("out"); ap.add_argument("--stamps", action="store_true"); ap.add_argument("--W", type=int, default=8); ap.add_argument("--S0", type=int, default=16)
    ap.add_argument("--nosplit", action="store_true"); ap.add_argument("--W0", type=int, default=8); ap.add_argument("--ke", type=int, default=0); ap.add_argument("--pause", action="store_true"); ap.add_argument("--half", action="store_true"); ap.add_argument("--six", action="store_true"); ap.add_argument("--psleep", type=int, default=3); ap.add_argument("--pack", action="store_true"); ap.add_argument("--nopipe2", action="store_true"); ap.add_argument("--nopipe3", action="store_true"); ap.add_argument("--light", type=int, default=0); ap.add_argument("--sleep3", type=int, default=0); ap.add_argument("--WL", default="nt"); ap.add_argument("--LD", default="sc1"); ap.add_argument("--ST", default="sc1")
    a = ap.parse_args()
    open(a.out, "w").write(gen(W=a.W, stamps=a.stamps, S0=a.S0, SPLITFFN=not a.nosplit, W0=a.W0, KEARLY=a.ke, PAUSE=a.pause, LIGHT=a.light, HALF=a.half, SIX=a.six, PSLEEP=a.psleep, PACK=True, PIPE2=False, PIPE3=not a.nopipe3, SLEEP3=a.sleep3, WL=a.WL, LD=a.LD, ST=a.ST))
    print("WS_STAMP", hex(WS_STAMP), "WS_SIZE", hex(WS_SIZE), "LDS", LDS_BYTES)
```

```python
from asmlib import *
import math, struct, sys
LOG2E = math.log2(math.e)
def f2u(x): return struct.unpack("<I", struct.pack("<f", x))[0]
def fhex(x): return f"0x{f2u(x):08x}"

WS_EPOCH = 0x0
WS_CNT  = 0x1000
WS_Q2   = 0x10000
WS_GU   = WS_Q2 + 16*4096*8
WS_PART = WS_GU + 2*16*1792*8
WS_ML   = WS_PART + 256*512*8
WS_OUT2 = WS_ML + 256*32
WS_STAMP = WS_OUT2 + 32*4*448*8
WS_SIZE = WS_STAMP + 2048*64
L_STG = 131072
L_QL  = L_STG + 28672
L_OB  = L_QL + 1024
L_XN  = L_OB + 1536
L_CNT = L_XN + 896
LDS_BYTES = L_CNT + 64

S_K, S_V, S_WS, S_WA, S_WB, S_X = 8, 12, 16, 20, 24, 28
P_X, P_K, P_V, P_WQ, P_WO, P_BX, P_G, P_U, P_WD, P_OUT, P_DBG, P_WS = 40, 42, 44, 46, 48, 50, 52, 54, 56, 58, 60, 62
S_EP, S_TAG = 64, 65
S_LB = 66
S_SC = 67
S_N2 = 68
S_MK = 69
S_R = 70
S_SPIN = 71
S_PB = 98
S_WI = 99
S_T = 32

class R:
    LANE = 1
    DMA = 2; KA = 10; VA = 14
    T = 22
    M = 32; L = 33; ALPHA = 34; MN = 35; P = 36
    TAGV = 38; IDX = 39; MASK = 38
    S = 40
    Q = 44
    KS = 76
    VS = 108
    O = 140
    UG = 204
    CA = 236
    WA = 238
    MASK2 = 237
    NV = 240

class Cfg:
    W = 8
    nt = True
    S0 = 16
    V0EARLY = 4

def round_bf16(A, v):
    A(f"v_cvt_pk_bf16_f32 v{v}, v{v}, v{v}")
    A(f"v_lshlrev_b32 v{v}, 16, v{v}")

def gelu(A, g, t0, t1):
    A(f"""
    v_mul_f32 v{t0}, v{g}, v{g}
    v_mul_f32 v{t0}, v{t0}, v{g}
    v_mov_b32 v{t1}, {fhex(0.044715)}
    v_fma_f32 v{t0}, v{t0}, v{t1}, v{g}
    v_mul_f32 v{t0}, {fhex(2*0.7978845608028654*LOG2E)}, v{t0}
    v_exp_f32 v{t0}, v{t0}
    s_nop 0
    v_add_f32 v{t0}, 1.0, v{t0}
    v_rcp_f32 v{t0}, v{t0}
    s_nop 0
    v_fma_f32 v{t0}, v{t0}, -2.0, 1.0
    v_add_f32 v{t0}, 1.0, v{t0}
    v_mul_f32 v{t1}, 0.5, v{g}
    v_mul_f32 v{g}, v{t1}, v{t0}
    """)
    round_bf16(A, g)

def main_addrs(A):
    L = R.LANE; T = R.T
    A(f"""
    v_and_b32 v{T}, 15, v{L}
    v_lshrrev_b32 v{T+1}, 5, v{L}
    v_lshlrev_b32 v{T+2}, 1, v{T+1}
    v_xor_b32 v{T}, v{T}, v{T+2}
    v_lshlrev_b32 v{T}, 4, v{T}
    v_lshlrev_b32 v{T+1}, 9, v{T+1}
    v_and_b32 v{T+2}, 16, v{L}
    v_lshl_add_u32 v{T+1}, v{T+2}, 4, v{T+1}
    v_add_u32 v{T}, v{T}, v{T+1}
    v_add_u32 v{T+1}, {Cfg.HI}, v{T}
    """)
    for p in range(8):
        const = (4*(p & 3)) | (p >> 2)
        src = T if p < 4 else T+1
        if const == 0: A(f"v_mov_b32 v{R.DMA+p}, v{src}")
        else: A(f"v_xor_b32 v{R.DMA+p}, {const << 4}, v{src}")

def read_addrs(A):
    L = R.LANE; T = R.T
    A(f"""
    v_and_b32 v{T}, 15, v{L}
    v_lshlrev_b32 v{T+1}, 1, v{T}
    v_and_b32 v{T+1}, 15, v{T+1}
    v_lshrrev_b32 v{T+2}, 3, v{T}
    v_or_b32 v{T+1}, v{T+1}, v{T+2}
    v_lshrrev_b32 v{T+2}, 4, v{L}
    v_lshlrev_b32 v{T+2}, 1, v{T+2}
    v_xor_b32 v{T+1}, v{T+1}, v{T+2}
    v_lshlrev_b32 v{T+1}, 4, v{T+1}
    v_lshlrev_b32 v{T}, 9, v{T}
    v_add3_u32 v{T}, s{S_LB}, v{T}, v{T+1}
    """)
    for k, m in enumerate((0, 1, 8, 9)):
        if m == 0: A(f"v_mov_b32 v{R.KA+k}, v{T}")
        else: A(f"v_xor_b32 v{R.KA+k}, {m << 4}, v{T}")
    A(f"""
    v_lshrrev_b32 v{T}, 2, v{L}
    v_lshlrev_b32 v{T+1}, 1, v{T}
    v_and_b32 v{T+1}, 15, v{T+1}
    v_lshrrev_b32 v{T+2}, 3, v{T}
    v_or_b32 v{T+1}, v{T+1}, v{T+2}
    v_bfe_u32 v{T+2}, v{L}, 1, 1
    v_xor_b32 v{T+1}, v{T+1}, v{T+2}
    v_lshlrev_b32 v{T+1}, 4, v{T+1}
    v_lshlrev_b32 v{T}, 9, v{T}
    v_and_b32 v{T+2}, 1, v{L}
    v_lshl_add_u32 v{T}, v{T+2}, 3, v{T}
    v_add3_u32 v{T}, s{S_LB}, v{T}, v{T+1}
    v_add_u32 v{T}, 8192, v{T}
    """)
    for k in range(8):
        if k == 0: A(f"v_mov_b32 v{R.VA+k}, v{T}")
        else: A(f"v_xor_b32 v{R.VA+k}, {(2*k) << 4}, v{T}")

def dma_piece(A, p, ldsbase_s, ldsoff, srd_s, soff, throttle=True, W=None):
    W = W or Cfg.W
    if throttle: A(f"s_waitcnt vmcnt({W-1})")
    if p % 4 == 0:
        A(f"s_add_u32 m0, s{ldsbase_s}, {ldsoff + (p//4)*4096}")
        A("s_nop 0")
    A(f"buffer_load_dwordx4 v{R.DMA+p}, s[{srd_s}:{srd_s+3}], s{soff} offen offset:{(p&3)*1024}{' nt' if Cfg.nt else ''} lds")

def iss(A, ldsbase_s, ldsoff, srd_s, soff, throttle=True, rng=range(8)):
    return [(lambda p=p: dma_piece(A, p, ldsbase_s, ldsoff, srd_s, soff, throttle)) for p in rng]

class Pts:
    def __init__(self, fs): self.it = iter(fs) if fs else None
    def __call__(self, n=1):
        for _ in range(n):
            if self.it is not None:
                f = next(self.it, None)
                if f: f()
    def flush(self):
        if self.it is not None:
            for f in self.it: f()

def k_tile(A, issue, pre=None, half=None):
    pt = Pts(issue)
    for s in range(8):
        A(f"ds_read_b128 v[{R.KS+4*s}:{R.KS+4*s+3}], v{R.KA+(s&3)} offset:{(s>>2)*256}")
    if pre: pre()
    for s in range(8):
        A(f"s_waitcnt lgkmcnt({7-s})")
        A(f"v_mfma_f32_16x16x32_bf16 v[{R.S}:{R.S+3}], v[{R.KS+4*s}:{R.KS+4*s+3}], v[{R.Q+4*s}:{R.Q+4*s+3}], {'0' if s==0 else f'v[{R.S}:{R.S+3}]'}")
    pt(2)
    for k in range(4): A(f"v_xor_b32 v{R.KA+k}, 0x4000, v{R.KA+k}")
    T = R.T; S = R.S
    A("s_nop 3")
    A(f"v_cvt_pk_bf16_f32 v{T}, v{S}, v{S+1}")
    A(f"v_cvt_pk_bf16_f32 v{T+1}, v{S+2}, v{S+3}")
    A(f"v_lshlrev_b32 v{S}, 16, v{T}")
    A(f"v_and_b32 v{S+1}, 0xffff0000, v{T}")
    A(f"v_lshlrev_b32 v{S+2}, 16, v{T+1}")
    A(f"v_and_b32 v{S+3}, 0xffff0000, v{T+1}")
    if Cfg.HALF:
        for i in range(4): A(f"v_fma_f32 v{S+i}, v{S+i}, s{S_SC}, v{R.MASK}")
    else:
        for i in range(4): A(f"v_mul_f32 v{S+i}, s{S_SC}, v{S+i}")
    A(f"v_max3_f32 v{R.MN}, v{S}, v{S+1}, v{S+2}")
    A(f"v_max3_f32 v{R.MN}, v{R.MN}, v{S+3}, v{R.M}")
    pt()
    xrow_reduce(A, "v_max_f32", R.MN, T)
    pt()
    A(f"v_sub_f32 v{R.ALPHA}, v{R.M}, v{R.MN}")
    for i in range(4): A(f"v_sub_f32 v{S+i}, v{S+i}, v{R.MN}")
    A(f"v_exp_f32 v{R.ALPHA}, v{R.ALPHA}")
    for i in range(4): A(f"v_exp_f32 v{S+i}, v{S+i}")
    A(f"v_mov_b32 v{R.M}, v{R.MN}")
    if not half: pt()
    A(f"v_add_f32 v{T}, v{S}, v{S+1}")
    A(f"v_add_f32 v{T+1}, v{S+2}, v{S+3}")
    A(f"v_cvt_pk_bf16_f32 v{R.P}, v{S}, v{S+1}")
    A(f"v_cvt_pk_bf16_f32 v{R.P+1}, v{S+2}, v{S+3}")
    A(f"v_add_f32 v{T}, v{T}, v{T+1}")
    A(f"v_fma_f32 v{R.L}, v{R.L}, v{R.ALPHA}, v{T}")
    if half and issue:
        lb = half()
        pt.flush()
        A(f"{lb}:")
    else:
        pt.flush()

_lbl = [0]
def newlabel(s):
    _lbl[0] += 1
    return f"L_{s}_{_lbl[0]}"

def v_tile(A, issue, half=None, first=False):
    def rd(B): A(f"ds_read_b64_tr_b16 v[{R.VS+2*B}:{R.VS+2*B+1}], v{R.VA+(B&7)} offset:{(B>>3)*256}")
    for B in range(8): rd(B)
    if not first:
        lb = newlabel("norescale")
        A(f"v_cmp_neq_f32 vcc, 1.0, v{R.ALPHA}")
        A(f"s_cbranch_vccz {lb}")
        for i in range(64): A(f"v_mul_f32 v{R.O+i}, v{R.O+i}, v{R.ALPHA}")
        A(f"{lb}:")
    A("s_nop 1")
    for B in range(16):
        A(f"s_waitcnt lgkmcnt({7 if B < 8 else 15-B})")
        cin = "0" if first else f"v[{R.O+4*B}:{R.O+4*B+3}]"
        A(f"v_mfma_f32_16x16x16_bf16 v[{R.O+4*B}:{R.O+4*B+3}], v[{R.VS+2*B}:{R.VS+2*B+1}], v[{R.P}:{R.P+1}], {cin}")
        if B < 8: rd(B+8)
    if first:
        for k in range(8): A(f"v_xor_b32 v{R.VA+k}, 0x4000, v{R.VA+k}")
    if issue:
        for f in issue[:4]: f()
        if half:
            lb2 = half()
            for f in issue[4:]: f()
            A(f"{lb2}:")
        else:
            for f in issue[4:]: f()
        for k in range(8): A(f"v_xor_b32 v{R.VA+k}, 0x4000, v{R.VA+k}")
    return

def v_toggle(A):
    for k in range(8): A(f"v_xor_b32 v{R.VA+k}, 0x4000, v{R.VA+k}")

def tagcheck(A, acc, regs):
    t1, t2 = R.T+8, R.T+9
    regs = list(regs); i = 0; first = True
    while i < len(regs):
        if first:
            A(f"v_xor_b32 v{acc}, v{regs[i]}, v{R.TAGV}"); i += 1; first = False
        elif i + 1 < len(regs):
            A(f"v_xor_b32 v{t1}, v{regs[i]}, v{R.TAGV}")
            A(f"v_xor_b32 v{t2}, v{regs[i+1]}, v{R.TAGV}")
            A(f"v_or3_b32 v{acc}, v{acc}, v{t1}, v{t2}")
            i += 2
        else:
            A(f"v_xor_b32 v{t1}, v{regs[i]}, v{R.TAGV}")
            A(f"v_or_b32 v{acc}, v{acc}, v{t1}")
            i += 1

def poll_loop(A, name, loads, tagregs, acc, first_wait=None, between=None, sleep=0):
    lp = newlabel(name); done = newlabel(name + "_done"); chk = newlabel(name + "_chk")
    A(f"s_mov_b32 s{S_SPIN}, 0x40000")
    if first_wait is not None:
        loads()
        if between: between()
        A(f"s_waitcnt vmcnt({first_wait})")
        A(f"s_branch {chk}")
    A(f"{lp}:")
    if sleep: A(f"s_sleep {sleep}")
    loads()
    A("s_waitcnt vmcnt(0)")
    A(f"{chk}:")
    tagcheck(A, acc, tagregs)
    A(f"v_cmp_ne_u32 vcc, 0, v{acc}")
    A(f"s_cbranch_vccz {done}")
    A(f"s_sub_u32 s{S_SPIN}, s{S_SPIN}, 1")
    A(f"s_cmp_lg_u32 s{S_SPIN}, 0")
    A(f"s_cbranch_scc1 {lp}")
    A(f"{done}:")

def pipe_poll(A, name, loads, tags, use, RA, RB, n, acc, psleep):
    lp = newlabel(name); da = newlabel(name + "_a"); db = newlabel(name + "_b"); done = newlabel(name + "_done")
    A(f"s_mov_b32 s{S_SPIN}, 0x40000")
    loads(RA)
    if psleep: A(f"s_sleep {psleep}")
    loads(RB)
    A(f"{lp}:")
    A(f"s_waitcnt vmcnt({n})")
    tagcheck(A, acc, tags(RA))
    A(f"v_cmp_ne_u32 vcc, 0, v{acc}")
    A(f"s_cbranch_vccz {da}")
    loads(RA)
    A(f"s_waitcnt vmcnt({n})")
    tagcheck(A, acc, tags(RB))
    A(f"v_cmp_ne_u32 vcc, 0, v{acc}")
    A(f"s_cbranch_vccz {db}")
    loads(RB)
    A(f"s_sub_u32 s{S_SPIN}, s{S_SPIN}, 1")
    A(f"s_cmp_lg_u32 s{S_SPIN}, 0")
    A(f"s_cbranch_scc1 {lp}")
    A(f"{da}:")
    use(RA)
    A(f"s_branch {done}")
    A(f"{db}:")
    use(RB)
    A(f"{done}:")

def stamp_store(A, n):
    if not Asm.stamps: return
    A(f"s_lshl_b32 s{S_T}, s2, 3"); A(f"s_add_u32 s{S_T}, s{S_T}, s3"); A(f"s_lshl_b32 s{S_T}, s{S_T}, 6"); A(f"s_add_u32 s{S_T}, s{S_T}, {WS_STAMP}")
    A("s_mov_b64 exec, 1")
    A("v_mov_b32 v2, 0")
    for i in range(n):
        A(f"v_mov_b32 v3, s{72+2*i}")
        A(f"buffer_store_dword v3, v2, s[{S_WS}:{S_WS+3}], s{S_T} offen offset:{4*i}")
    A("s_mov_b64 exec, -1")


def lds_arrive(A, off, vaddr, vone):
    A("s_mov_b64 exec, 1")
    A(f"ds_add_u32 v{vaddr}, v{vone} offset:{off}")
    A("s_mov_b64 exec, -1")

def lds_wait(A, off, target, vaddr, vtmp, sleep=0):
    lp = newlabel("ldswait"); done = newlabel("ldsdone")
    A(f"s_mov_b32 s{S_SPIN}, 0x400000")
    A(f"{lp}:")
    A(f"ds_read_b32 v{vtmp}, v{vaddr} offset:{off}")
    A("s_waitcnt lgkmcnt(0)")
    A(f"v_readfirstlane_b32 s{S_T}, v{vtmp}")
    A(f"s_cmp_ge_u32 s{S_T}, {target}")
    A(f"s_cbranch_scc1 {done}")
    if sleep: A(f"s_sleep {sleep}")
    A(f"s_sub_u32 s{S_SPIN}, s{S_SPIN}, 1")
    A(f"s_cmp_lg_u32 s{S_SPIN}, 0")
    A(f"s_cbranch_scc1 {lp}")
    A(f"{done}:")

def gen_kernel(A, name):
    kernel_header(A, name)
    T = R.T; L = R.LANE
    END = f"{name}_done"; AUX = f"{name}_aux"
    A(f"""
    s_cmp_ge_u32 s2, 256
    s_cbranch_scc1 {END}
    STAMP0
    s_load_dwordx16 s[40:55], s[0:1], 0
    s_load_dwordx8 s[56:63], s[0:1], 64
    v_and_b32 v{L}, 63, v0
    v_lshrrev_b32 v2, 6, v0
    s_nop 0
    v_readfirstlane_b32 s3, v2
    s_nop 3
    s_cmp_ge_u32 s3, 4
    s_cbranch_scc1 {AUX}
    """)
    main_addrs(A)
    A(f"""
    s_lshl_b32 s{S_LB}, s3, 15
    s_lshr_b32 s4, s2, 3
    s_lshl_b32 s{S_PB}, s4, 22
    s_and_b32 s5, s2, 7
    s_lshl_b32 s5, s5, 2
    s_add_u32 s{S_WI}, s5, s3
    s_lshl_b32 s5, s{S_WI}, {12 if Cfg.TP4 else 13}
    s_add_u32 s{S_N2}, s{S_PB}, s5
    s_mov_b32 s{S_SC}, {fhex(0.0625*LOG2E)}
    s_mov_b32 s{S_MK}, s{S_LB}
    s_mov_b32 s{S_R}, 2
    s_waitcnt lgkmcnt(0)
    STAMP1
    """)
    srd(A, S_K, P_K, P_K+1, 128 << 20)
    srd(A, S_V, P_V, P_V+1, 128 << 20)
    srd(A, S_WS, P_WS, P_WS+1, WS_SIZE)
    read_addrs(A)
    A(f"v_mov_b32 v{R.M}, {fhex(-1e30)}")
    A(f"v_mov_b32 v{R.L}, 0")
    if Cfg.HALF:
        A(f"v_mov_b32 v{R.MASK}, 0")
        A(f"v_mov_b32 v{R.MASK2}, 0")
        A(f"v_mov_b32 v{T}, {fhex(-1e30)}")
        A(f"v_cmp_lt_u32 vcc, 31, v{L}")
        A("s_nop 1")
        A(f"v_cndmask_b32 v{R.MASK2}, v{R.MASK2}, v{T}, vcc")
    A(f"""
    v_and_b32 v{T+5}, 15, v{L}
    v_lshlrev_b32 v{T+5}, 9, v{T+5}
    v_lshrrev_b32 v{T+6}, 4, v{L}
    v_lshl_add_u32 v{T+5}, v{T+6}, 5, v{T+5}
    v_add_u32 v{T+5}, {L_QL}, v{T+5}
    v_mov_b32 v{T+7}, {L_CNT}
    """)
    if Cfg.S0 < 16:
        A(f"s_lshr_b32 s4, s2, 3"); A(f"s_lshl_b32 s4, s4, 8"); A(f"s_add_u32 s4, s4, {WS_CNT}"); A(f"v_mov_b32 v{R.CA}, s4")
    A("s_barrier")
    if not Cfg.SIX:
        for i in range(64): A(f"v_mov_b32 v{R.O+i}, 0")
    if Cfg.QZEROFIRST:
        for i in range(32): A(f"v_mov_b32 v{R.Q+i}, 0")
    for p in range(8): dma_piece(A, p, S_LB, 0, S_K, S_N2, throttle=(0 < Cfg.W0 <= p), W=Cfg.W0)
    A("STAMP2")
    if not Cfg.QZEROFIRST:
        for i in range(32): A(f"v_mov_b32 v{R.Q+i}, 0")
    if Cfg.PAUSE:
        lds_wait(A, 12, 4, T+7, T+8, sleep=1)
    thr = Cfg.W0 > 0
    for p in range(8): dma_piece(A, p, S_LB, 8192, S_V, S_N2, throttle=thr, W=Cfg.W0)
    A(f"s_add_u32 s{S_N2}, s{S_N2}, {32*8192}")
    for p in range(8): dma_piece(A, p, S_LB, 16384, S_K, S_N2, throttle=thr, W=Cfg.W0)
    for p in range(8): dma_piece(A, p, S_LB, 24576, S_V, S_N2, throttle=thr, W=Cfg.W0)
    A(f"s_add_u32 s{S_N2}, s{S_N2}, {32*8192}")
    def reg_piece(p, dst, srd_s):
        if thr: A(f"s_waitcnt vmcnt({Cfg.W0-1})")
        A(f"buffer_load_dwordx4 v[{dst+4*p}:{dst+4*p+3}], v{R.DMA+p}, s[{srd_s}:{srd_s+3}], s{S_N2} offen offset:{(p&3)*1024}{' nt' if Cfg.nt else ''}")
    if Cfg.SIX:
        for p in range(8): reg_piece(p, R.O, S_K)
        for p in range(8): reg_piece(p, R.UG, S_V)
        A(f"s_add_u32 s{S_N2}, s{S_N2}, {32*8192}")
        A(f"v_lshlrev_b32 v{R.WA}, 4, v{L}")
        A(f"v_add_u32 v{R.WA}, s{S_LB}, v{R.WA}")
    A("STAMP6")
    if 'q' not in Cfg.ABL: lds_wait(A, 4, 4, T+7, T+8, sleep=1)
    A("STAMP7")
    A("EXEC 0x0003000300030003")
    for s_ in range(8):
        A(f"ds_read_b128 v[{R.Q+4*s_}:{R.Q+4*s_+3}], v{T+5} offset:{(s_&1)*16 + (s_>>1)*128}")
    A("s_mov_b64 exec, -1")
    A("s_waitcnt lgkmcnt(0)")
    A("STAMP8")
    if Cfg.SIX:
        def k2write():
            A("s_waitcnt vmcnt(8)")
            for p in range(8):
                A(f"ds_write_b128 v{R.WA}, v[{R.O+4*p}:{R.O+4*p+3}] offset:{p*1024}")
        k_tile(A, [k2write])
        A("s_waitcnt lgkmcnt(0)")
        v_tile(A, None, first=True)
        A(f"s_xor_b32 s{S_MK}, s{S_MK}, 0x4000")
        A(f"s_mov_b32 s{S_R}, 3")
    LOOP = f"{name}_loop"
    A(f"{LOOP}:")
    def pre():
        if Cfg.S0 < 16:
            lb = newlabel("noatom")
            A(f"s_cmp_lt_u32 s{S_R}, {Cfg.S0 - 1}")
            A(f"s_cbranch_scc1 {lb}")
            A(f"v_mov_b32 v{R.IDX}, 1")
            A("s_mov_b64 exec, 1")
            A(f"buffer_atomic_add v{R.IDX}, v{R.CA}, s[{S_WS}:{S_WS+3}], 0 offen sc0 sc1")
            A("s_mov_b64 exec, -1")
            A(f"{lb}:")
    TW = 12 if Cfg.HALF else 24
    def halfskip():
        lb = newlabel("halfskip")
        A(f"s_cmp_ge_u32 s{S_R}, {Cfg.S0}")
        A(f"s_cbranch_scc1 {lb}")
        return lb
    hs = halfskip if Cfg.HALF else None
    if Cfg.HALF:
        lb = newlabel("nomask")
        A(f"s_cmp_eq_u32 s{S_R}, {Cfg.S0 + 2}")
        A(f"s_cbranch_scc0 {lb}")
        A(f"v_mov_b32 v{R.MASK}, v{R.MASK2}")
        A(f"{lb}:")
    A(f"s_waitcnt vmcnt({TW})")
    k_tile(A, iss(A, S_MK, 0, S_K, S_N2), pre=pre, half=hs)
    if Cfg.SIX:
        lb = newlabel("nov2")
        A(f"s_cmp_eq_u32 s{S_R}, 3")
        A(f"s_cbranch_scc0 {lb}")
        A("s_waitcnt vmcnt(8)")
        for p in range(8):
            A(f"ds_write_b128 v{R.WA}, v[{R.UG+4*p}:{R.UG+4*p+3}] offset:{8192 + p*1024}")
        A("s_waitcnt lgkmcnt(0)")
        A(f"{lb}:")
    A(f"s_waitcnt vmcnt({TW})")
    v_tile(A, iss(A, S_MK, 8192, S_V, S_N2), half=hs)
    A(f"s_xor_b32 s{S_MK}, s{S_MK}, 0x4000")
    A(f"s_add_u32 s{S_R}, s{S_R}, 1")
    if Cfg.S0 < 16:
        lb = newlabel("static"); lb2 = newlabel("idx")
        A(f"s_cmp_lt_u32 s{S_R}, {Cfg.S0}")
        A(f"s_cbranch_scc1 {lb}")
        A(f"s_waitcnt vmcnt({8 if Cfg.HALF else 16})")
        A(f"v_readfirstlane_b32 s4, v{R.IDX}")
        A(f"s_nop 0")
        if Cfg.HALF:
            A(f"s_lshl_b32 s5, s4, 12")
            A(f"s_add_u32 s5, s5, {Cfg.S0*32*8192}")
            A(f"s_add_u32 s{S_N2}, s{S_PB}, s5")
            A(f"s_cmp_lt_u32 s4, {(16-Cfg.S0)*64}")
            A(f"s_cbranch_scc1 {LOOP}")
            A(f"s_branch {name}_epi")
        else:
            A(f"s_add_u32 s4, s4, {Cfg.S0*32}")
            A(f"s_branch {lb2}")
        A(f"{lb}:")
        A(f"s_lshl_b32 s4, s{S_R}, 5")
        A(f"s_add_u32 s4, s4, s{S_WI}")
        A(f"{lb2}:")
    else:
        A(f"s_lshl_b32 s4, s{S_R}, 5")
        A(f"s_add_u32 s4, s4, s{S_WI}")
    if Cfg.TP4:
        assert Cfg.HALF or Cfg.S0 == 16
        A(f"s_lshl_b32 s5, s{S_R}, 18")
        A(f"s_lshl_b32 s6, s{S_WI}, 12")
        A(f"s_add_u32 s5, s5, s6")
    else:
        A(f"s_lshl_b32 s5, s4, 13")
    A(f"s_add_u32 s{S_N2}, s{S_PB}, s5")
    A("s_cmp_lt_u32 s4, 512")
    A(f"s_cbranch_scc1 {LOOP}")
    A(f"{name}_epi:")
    def maskupd(delta):
        if Cfg.HALF:
            lb = newlabel("nomask")
            A(f"s_cmp_ge_u32 s{S_R}, {Cfg.S0 + 2 - delta}")
            A(f"s_cbranch_scc0 {lb}")
            A(f"v_mov_b32 v{R.MASK}, v{R.MASK2}")
            A(f"{lb}:")
    maskupd(0)
    A(f"s_waitcnt vmcnt({12 if Cfg.HALF else 24})")
    k_tile(A, None)
    A(f"s_waitcnt vmcnt({8 if Cfg.HALF else 16})")
    v_tile(A, None)
    v_toggle(A)
    maskupd(1)
    A(f"s_waitcnt vmcnt({4 if Cfg.HALF else 8})")
    k_tile(A, None)
    W0 = R.UG
    xrow_reduce(A, "v_add_f32", R.L, T)
    A(f"""
    v_and_b32 v{W0+2}, 15, v{L}
    v_lshlrev_b32 v{W0+2}, 3, v{W0+2}
    v_add_u32 v{W0+2}, s{S_LB}, v{W0+2}
    v_mov_b32 v{W0+4}, v{R.M}
    v_mov_b32 v{W0+5}, v{R.L}
    v_mov_b32 v{W0+6}, {L_CNT}
    v_mov_b32 v{W0+7}, 1
    s_mov_b64 exec, 3
    ds_write_b64 v{W0+2}, v[{W0+4}:{W0+5}] offset:2048
    s_mov_b64 exec, -1
    v_and_b32 v{W0+8}, 15, v{L}
    v_lshlrev_b32 v{W0}, 10, v{W0+8}
    v_lshrrev_b32 v{W0+1}, 4, v{L}
    v_lshl_add_u32 v{W0}, v{W0+1}, 4, v{W0}
    v_lshlrev_b32 v{W0+1}, 4, v{L}
    v_add_u32 v{W0+1}, 16384, v{W0+1}
    v_cmp_gt_u32 vcc, 2, v{W0+8}
    s_waitcnt lgkmcnt(0)
    v_cndmask_b32 v{W0}, v{W0+1}, v{W0}, vcc
    v_add_u32 v{W0}, s{S_LB}, v{W0}
    s_mov_b64 exec, 1
    ds_add_u32 v{W0+6}, v{W0+7} offset:16
    s_mov_b64 exec, -1
    s_waitcnt vmcnt(0)
    STAMP9
    """)
    def rd(B): A(f"ds_read_b64_tr_b16 v[{R.VS+2*B}:{R.VS+2*B+1}], v{R.VA+(B&7)} offset:{(B>>3)*256}")
    def wr(B): A(f"ds_write_b128 v{W0}, v[{R.O+4*B}:{R.O+4*B+3}] offset:{B*64}")
    if Asm.stamps: A("s_waitcnt lgkmcnt(0)")
    else: A("s_waitcnt lgkmcnt(0)")
    for B in range(12): rd(B)
    lb = newlabel("norescale")
    A(f"v_cmp_neq_f32 vcc, 1.0, v{R.ALPHA}")
    A(f"s_cbranch_vccz {lb}")
    for i in range(64): A(f"v_mul_f32 v{R.O+i}, v{R.O+i}, v{R.ALPHA}")
    A(f"{lb}:")
    A("s_nop 1")
    for B in range(16):
        A("s_waitcnt lgkmcnt(11)")
        A(f"v_mfma_f32_16x16x16_bf16 v[{R.O+4*B}:{R.O+4*B+3}], v[{R.VS+2*B}:{R.VS+2*B+1}], v[{R.P}:{R.P+1}], v[{R.O+4*B}:{R.O+4*B+3}]")
        if B < 4: rd(B+12)
        else: wr(B-4)
    wr(12); wr(13); A("s_nop 1"); wr(14); A("s_nop 1"); wr(15)
    A("s_waitcnt lgkmcnt(0)")
    A("s_barrier")
    A("STAMP10")
    if Asm.stamps:
        A("s_mov_b64 s[94:95], 0"); A("s_mov_b64 s[96:97], 0"); A("s_mov_b64 s[78:79], 0"); A("s_mov_b64 s[80:81], 0"); A("s_mov_b64 s[82:83], 0")
        stamp_store(A, 13)
    A("s_endpgm")

    A(f"{AUX}:")
    A("s_sub_u32 s3, s3, 4")
    A(f"""
    v_lshrrev_b32 v{T+4}, 3, v{L}
    v_and_b32 v{T+5}, 7, v{L}
    v_lshlrev_b32 v{T+5}, 4, v{T+5}
    v_lshl_add_u32 v{T+6}, v{T+4}, 13, v{T+5}
    s_movk_i32 s{S_T}, 3584
    v_mul_lo_u32 v{T+7}, v{T+4}, s{S_T}
    v_add_u32 v{T+7}, v{T+7}, v{T+5}
    v_lshlrev_b32 v{T+3}, 4, v{L}
    s_and_b32 s33, s2, 3
    s_lshr_b32 s34, s2, 2
    s_min_u32 s35, s34, 55
    s_cmp_ge_u32 s35, 28
    s_cselect_b32 s36, 28, 0
    s_cselect_b32 s37, 1, 0
    s_sub_u32 s35, s35, s36
    s_mul_i32 s38, s33, 112
    s_mul_i32 s39, s3, 28
    s_add_u32 s38, s38, s39
    s_lshl_b32 s4, s38, 13
    s_lshl_b32 s5, s34, 7
    s_add_u32 s4, s4, s5
    s_mul_i32 s6, s38, 3584
    s_lshl_b32 s5, s35, 7
    s_add_u32 s6, s6, s5
    s_mul_i32 s7, s3, {28*128}
    s_mul_i32 s39, s3, 896
    v_mov_b32 v44, 0
    v_mov_b32 v45, 0
    v_mov_b32 v46, 0
    v_mov_b32 v47, 0
    """)
    CN, ONE = R.CA, R.CA+1
    FV = R.UG + 30
    A(f"v_mov_b32 v{CN}, {L_CNT}")
    A(f"v_mov_b32 v{ONE}, 1")
    A(f"v_mov_b32 v{FV}, v{T+7}")
    lb = newlabel("nozero")
    A("s_cmp_eq_u32 s3, 0")
    A(f"s_cbranch_scc0 {lb}")
    A("s_mov_b64 exec, 1")
    A(f"ds_write_b64 v{CN}, v[44:45]")
    A(f"ds_write_b64 v{CN}, v[44:45] offset:8")
    A(f"ds_write_b64 v{CN}, v[44:45] offset:16")
    A("s_mov_b64 exec, -1")
    A(f"{lb}:")
    A(f"""
    s_waitcnt lgkmcnt(0)
    STAMP1
    s_load_dword s{S_EP}, s[{P_WS}:{P_WS+1}], {WS_EPOCH}
    """)
    srd(A, S_X, P_X, P_X+1, 3584)
    srd(A, S_WS, P_WS, P_WS+1, WS_SIZE)
    srd(A, S_WA, P_WQ, P_WQ+1, 448*4096*2)
    if Cfg.S0 < 16:
        lb = newlabel("noinit")
        A(f"""
        s_and_b32 s36, s2, 31
        s_cmp_lt_u32 s36, 4
        s_cbranch_scc0 {lb}
        s_cmp_eq_u32 s3, 0
        s_cbranch_scc0 {lb}
        s_lshl_b32 s36, s36, 3
        s_lshr_b32 s38, s2, 5
        s_add_u32 s36, s36, s38
        s_lshl_b32 s36, s36, 8
        s_add_u32 s36, s36, {WS_CNT}
        s_mov_b64 exec, 1
        buffer_store_dword v44, v44, s[{S_WS}:{S_WS+3}], s36 offen sc1
        s_mov_b64 exec, -1
        {lb}:
        """)
    A("EXEC 0x00ffffffffffffff")
    A(f"buffer_load_dwordx4 v[44:47], v{T+3}, s[{S_X}:{S_X+3}], s39 offen {Cfg.XL}")
    A("s_mov_b64 exec, -1")
    A("s_barrier")
    for j in range(4):
        A(f"s_add_u32 m0, s7, {L_STG + j*1024}")
        A("EXEC 0xffffffff" if j == 3 else "s_nop 0")
        A(f"buffer_load_dwordx4 v{T+6}, s[{S_WA}:{S_WA+3}], s4 offen {Cfg.QL} lds")
        if j < 3: A(f"s_add_u32 s4, s4, {8*8192}")
    A("s_mov_b64 exec, -1")
    A("STAMP2")
    A(f"s_cmp_eq_u32 s37, 0")
    A(f"s_cselect_b32 s{S_WB}, s{P_G}, s{P_U}")
    A(f"s_cselect_b32 s{S_WB+1}, s{P_G+1}, s{P_U+1}")
    A(f"s_and_b32 s{S_WB+1}, s{S_WB+1}, 0xffff")
    A(f"s_mov_b32 s{S_WB+2}, {448*1792*2}")
    A(f"s_mov_b32 s{S_WB+3}, 0x20000")
    AA, BA, QP, GP, XW = R.UG+24, R.UG+25, R.UG+26, R.UG+27, R.UG+28
    A(f"""
    v_lshrrev_b32 v{T}, 2, v{L}
    v_lshlrev_b32 v{T}, 7, v{T}
    v_and_b32 v{T+1}, 3, v{L}
    v_lshl_add_u32 v{T}, v{T+1}, 3, v{T}
    s_lshl_b32 s4, s3, 5
    s_add_u32 s4, s4, {L_STG}
    v_add_u32 v{AA}, s4, v{T}
    v_mul_u32_u24 v{T+1}, 224, v{T+1}
    v_lshrrev_b32 v{T+2}, 4, v{L}
    v_lshl_add_u32 v{T+1}, v{T+2}, 3, v{T+1}
    v_add_u32 v{BA}, {L_XN}, v{T+1}
    v_and_b32 v{T+4}, 15, v{L}
    v_lshlrev_b32 v{T+2}, 5, v{T+2}
    v_lshl_add_u32 v{QP}, v{T+4}, 15, v{T+2}
    s_movk_i32 s4, 14336
    v_mul_lo_u32 v{GP}, v{T+4}, s4
    v_add_u32 v{GP}, v{GP}, v{T+2}
    s_mul_i32 s4, s3, 224
    s_mul_i32 s5, s33, 224
    s_sub_u32 s4, s4, s5
    s_add_u32 s4, s4, {L_XN}
    v_add_u32 v{XW}, s4, v{T+3}
    s_mul_i32 s38, s33, 14
    s_lshl_b64 s[92:93], 0x3fff, s38
    s_lshl_b32 s5, s3, 7
    s_lshl_b32 s4, s34, 9
    s_add_u32 s4, s4, s5
    s_lshl_b32 s39, s33, 17
    s_add_u32 s4, s4, s39
    s_add_u32 s4, s4, {WS_Q2}
    s_lshl_b32 s36, s35, 9
    s_add_u32 s36, s36, s5
    s_mul_i32 s5, s37, {16*1792*8}
    s_add_u32 s36, s36, s5
    s_mul_i32 s5, s33, {4*1792*8}
    s_add_u32 s36, s36, s5
    s_add_u32 s36, s36, {WS_GU}
    s_mov_b32 s5, 0x000f000f
    s_waitcnt lgkmcnt(0)
    """)
    G = 92; F = 48
    A(f"""
    s_mul_i32 s{S_TAG}, s{S_EP}, 0x9E3779B1
    s_add_u32 s{S_TAG}, s{S_TAG}, 0x7F4A7C15
    v_mov_b32 v{R.TAGV}, s{S_TAG}
    v_mov_b32 v{G+1}, s{S_TAG}
    v_mov_b32 v{G+3}, s{S_TAG}
    v_mov_b32 v{G+5}, s{S_TAG}
    v_mov_b32 v{G+7}, s{S_TAG}
    s_waitcnt vmcnt(4)
    """)
    for i in range(4):
        A(f"v_lshlrev_b32 v{F+2*i}, 16, v{44+i}")
        A(f"v_and_b32 v{F+2*i+1}, 0xffff0000, v{44+i}")
    S0 = T; Q0 = T+4; D0 = T+8
    A(f"v_pk_add_f32 v[{S0}:{S0+1}], v[{F}:{F+1}], v[{F+2}:{F+3}]")
    A(f"v_pk_add_f32 v[{Q0}:{Q0+1}], v[{F+4}:{F+5}], v[{F+6}:{F+7}]")
    A(f"v_pk_add_f32 v[{S0}:{S0+1}], v[{S0}:{S0+1}], v[{Q0}:{Q0+1}]")
    A(f"v_add_f32 v{S0}, v{S0}, v{S0+1}")
    wave_reduce(A, "v_add_f32", S0, T+2)
    A(f"v_mul_f32 v{S0}, {fhex(1.0/448)}, v{S0}")
    A(f"v_mov_b32 v{Q0}, 0"); A(f"v_mov_b32 v{Q0+1}, 0")
    A(f"v_mov_b32 v{S0+1}, v{S0}")
    A("EXEC 0x00ffffffffffffff")
    for i in range(4):
        A(f"v_pk_add_f32 v[{D0}:{D0+1}], v[{F+2*i}:{F+2*i+1}], v[{S0}:{S0+1}] neg_lo:[0,1] neg_hi:[0,1]")
        A(f"v_pk_fma_f32 v[{Q0}:{Q0+1}], v[{D0}:{D0+1}], v[{D0}:{D0+1}], v[{Q0}:{Q0+1}]")
    A("s_mov_b64 exec, -1")
    A(f"v_add_f32 v{Q0}, v{Q0}, v{Q0+1}")
    wave_reduce(A, "v_add_f32", Q0, T+2)
    A(f"v_mul_f32 v{Q0}, {fhex(1.0/448)}, v{Q0}")
    round_bf16(A, Q0)
    A(f"v_add_f32 v{Q0}, {fhex(1e-5)}, v{Q0}")
    round_bf16(A, Q0)
    A(f"v_sqrt_f32 v{Q0}, v{Q0}")
    round_bf16(A, S0)
    round_bf16(A, Q0)
    A(f"v_mov_b32 v{S0+1}, v{S0}")
    A(f"v_rcp_f32 v{Q0}, v{Q0}")
    for i in range(4):
        A(f"v_pk_add_f32 v[{F+2*i}:{F+2*i+1}], v[{F+2*i}:{F+2*i+1}], v[{S0}:{S0+1}] neg_lo:[0,1] neg_hi:[0,1]")
    A(f"v_mov_b32 v{Q0+1}, v{Q0}")
    for i in range(4):
        A(f"v_cvt_pk_bf16_f32 v{44+i}, v{F+2*i}, v{F+2*i+1}")
    for i in range(4):
        A(f"v_lshlrev_b32 v{F+2*i}, 16, v{44+i}")
        A(f"v_and_b32 v{F+2*i+1}, 0xffff0000, v{44+i}")
    for i in range(4):
        A(f"v_pk_mul_f32 v[{F+2*i}:{F+2*i+1}], v[{F+2*i}:{F+2*i+1}], v[{Q0}:{Q0+1}]")
    for i in range(4):
        A(f"v_cvt_pk_bf16_f32 v{44+i}, v{F+2*i}, v{F+2*i+1}")
    A(f"""
    s_mov_b64 exec, s[92:93]
    ds_write_b128 v{XW}, v[44:47]
    s_mov_b64 exec, -1
    STAMP3
    s_waitcnt vmcnt(0) lgkmcnt(0)
    """)
    lds_arrive(A, 0, CN, ONE)
    lds_wait(A, 0, 4, CN, T+8)
    A("STAMP4")
    XV = 76; AW = 108; AW2 = 128; C1 = 40; C2 = 124
    for s_ in range(7):
        A(f"ds_read_b64 v[{XV+2*s_}:{XV+2*s_+1}], v{BA} offset:{s_*32}")
        A(f"ds_read_b64_tr_b16 v[{AW+2*s_}:{AW+2*s_+1}], v{AA} offset:{s_*2048}")
    for s_ in range(7):
        A(f"s_waitcnt lgkmcnt({12-2*s_})")
        A(f"v_mfma_f32_16x16x16_bf16 v[{C1}:{C1+3}], v[{AW+2*s_}:{AW+2*s_+1}], v[{XV+2*s_}:{XV+2*s_+1}], {'0' if s_==0 else f'v[{C1}:{C1+3}]'}")
    def publish(C, vaddr, soff):
        A(f"s_mov_b32 exec_lo, s5"); A(f"s_mov_b32 exec_hi, s5")
        A("s_nop 5")
        A(f"v_mov_b32 v{G}, v{C}"); A(f"v_mov_b32 v{G+2}, v{C+1}"); A(f"v_mov_b32 v{G+4}, v{C+2}"); A(f"v_mov_b32 v{G+6}, v{C+3}")
        A(f"buffer_store_dwordx4 v[{G}:{G+3}], v{vaddr}, s[{S_WS}:{S_WS+3}], s{soff} offen {Cfg.ST}")
        A(f"buffer_store_dwordx4 v[{G+4}:{G+7}], v{vaddr}, s[{S_WS}:{S_WS+3}], s{soff} offen offset:16 {Cfg.ST}")
        A("s_mov_b64 exec, -1")
    publish(C1, QP, 4)
    if Cfg.PAUSE: lds_arrive(A, 12, CN, ONE)
    A("STAMP5")
    for j in range(4):
        A(f"s_add_u32 m0, s7, {L_STG + 14336 + j*1024}")
        A("EXEC 0xffffffff" if j == 3 else "s_nop 0")
        if 'ffn' not in Cfg.ABL: A(f"buffer_load_dwordx4 v{FV}, s[{S_WB}:{S_WB+3}], s6 offen {Cfg.WL} lds")
        if j < 3: A(f"s_add_u32 s6, s6, {8*3584}")
    A("s_mov_b64 exec, -1")
    A("s_waitcnt vmcnt(0)")
    lds_arrive(A, 8, CN, ONE)
    lds_wait(A, 8, 4, CN, T+8)
    for s_ in range(7):
        A(f"ds_read_b64_tr_b16 v[{AW2+2*s_}:{AW2+2*s_+1}], v{AA} offset:{14336 + s_*2048}")
    for s_ in range(7):
        A(f"s_waitcnt lgkmcnt({6-s_})" if not Asm.stamps else "s_waitcnt lgkmcnt(0)")
        A(f"v_mfma_f32_16x16x16_bf16 v[{C2}:{C2+3}], v[{AW2+2*s_}:{AW2+2*s_+1}], v[{XV+2*s_}:{XV+2*s_+1}], {'0' if s_==0 else f'v[{C2}:{C2+3}]'}")
    lb = newlabel("noffn")
    A("s_cmp_ge_u32 s2, 224")
    A(f"s_cbranch_scc1 {lb}")
    publish(C2, GP, 36)
    A(f"{lb}:")
    A("STAMP6")
    QG = 44
    A(f"""
    s_lshr_b32 s4, s2, 6
    s_bfe_u32 s5, s2, 0x30003
    s_lshl_b32 s6, s4, 15
    s_lshl_b32 s7, s5, 12
    s_add_u32 s6, s6, s7
    s_lshl_b32 s7, s3, 10
    s_add_u32 s6, s6, s7
    s_add_u32 s6, s6, {WS_Q2}
    v_lshlrev_b32 v{T}, 4, v{L}
    v_lshlrev_b32 v{T+2}, 2, v{L}
    s_lshl_b32 s4, s3, 8
    s_add_u32 s4, s4, {L_QL}
    v_add_u32 v{T+2}, s4, v{T+2}
    """)
    def qloads():
        for kq in range(4):
            A(f"s_add_u32 s38, s6, {kq*131072}")
            A(f"buffer_load_dwordx4 v[{QG+4*kq}:{QG+4*kq+3}], v{T}, s[{S_WS}:{S_WS+3}], s38 offen {Cfg.LD}")
    poll_loop(A, "pollq", qloads, [QG+4*k+1 for k in range(4)] + [QG+4*k+3 for k in range(4)], T+1)
    A(f"""
    v_add_f32 v{QG}, v{QG}, v{QG+4}
    v_add_f32 v{QG+8}, v{QG+8}, v{QG+12}
    v_add_f32 v{QG+2}, v{QG+2}, v{QG+6}
    v_add_f32 v{QG+10}, v{QG+10}, v{QG+14}
    v_add_f32 v{QG}, v{QG}, v{QG+8}
    v_add_f32 v{QG+2}, v{QG+2}, v{QG+10}
    v_cvt_pk_bf16_f32 v{QG}, v{QG}, v{QG+2}
    ds_write_b32 v{T+2}, v{QG}
    s_waitcnt lgkmcnt(0)
    """)
    lds_arrive(A, 4, CN, ONE)
    A("STAMP7")
    UG = R.UG
    srd(A, S_WA, P_WO, P_WO+1, 4096*448*2)
    srd(A, S_WB, P_WD, P_WD+1, 1792*448*2)
    A(f"""
    v_lshrrev_b32 v{T+3}, 3, v{L}
    s_movk_i32 s4, 896
    v_mul_lo_u32 v{T+3}, v{T+3}, s4
    v_and_b32 v{T+4}, 7, v{L}
    v_lshl_add_u32 v{T+3}, v{T+4}, 4, v{T+3}
    s_and_b32 s4, s2, 7
    s_lshr_b32 s5, s2, 6
    s_bfe_u32 s6, s2, 0x30003
    s_min_u32 s6, s6, 6
    s_lshl_b32 s7, s4, 9
    s_lshl_b32 s38, s5, 7
    s_add_u32 s7, s7, s38
    s_lshl_b32 s38, s3, 5
    s_add_u32 s7, s7, s38
    s_mul_i32 s7, s7, 896
    s_lshl_b32 s6, s6, 7
    s_add_u32 s7, s7, s6
    s_lshl_b32 s38, s3, 12
    """)
    lds_wait(A, 4, 4, CN, T+8, sleep=1)
    for j in range(4):
        A(f"s_add_u32 m0, s38, {L_STG + j*1024}")
        A("s_nop 0")
        if 'w2' not in Cfg.ABL: A(f"buffer_load_dwordx4 v{T+3}, s[{S_WA}:{S_WA+3}], s7 offen {Cfg.WL} lds")
        if j < 3: A(f"s_add_u32 s7, s7, {8*896}")
    A(f"""
    s_lshl_b32 s4, s4, 2
    s_add_u32 s4, s4, s5
    s_mul_i32 s33, s4, {56*8}
    s_mul_i32 s4, s4, 56
    s_lshl_b32 s5, s3, 4
    s_add_u32 s4, s4, s5
    s_mul_i32 s4, s4, 896
    s_add_u32 s4, s4, s6
    s_lshl_b32 s38, s3, 11
    """)
    for j in range(2):
        A(f"s_add_u32 m0, s38, {L_STG + 16384 + j*1024}")
        A("s_nop 0")
        if 'w2' not in Cfg.ABL: A(f"buffer_load_dwordx4 v{T+3}, s[{S_WB}:{S_WB+3}], s4 offen {Cfg.WL} lds")
        if j < 1: A(f"s_add_u32 s4, s4, {8*896}")
    A(f"""
    s_mul_i32 s38, s3, {1792*8}
    s_add_u32 s33, s33, s38
    s_add_u32 s33, s33, {WS_GU}
    v_lshlrev_b32 v{T}, 4, v{L}
    """)
    for i in range(8):
        A(f"v_mov_b32 v{UG+4*i+1}, v{R.TAGV}"); A(f"v_mov_b32 v{UG+4*i+3}, v{R.TAGV}")
        A(f"v_mov_b32 v{UG+4*i}, 0"); A(f"v_mov_b32 v{UG+4*i+2}, 0")
    def guloads():
        A("EXEC 0x0fffffff")
        for i in range(8):
            A(f"s_add_u32 s38, s33, {(i>>2)*16*1792*8 + (i&3)*4*1792*8}")
            A(f"buffer_load_dwordx4 v[{UG+4*i}:{UG+4*i+3}], v{T}, s[{S_WS}:{S_WS+3}], s38 offen {Cfg.LD}")
        A("s_mov_b64 exec, -1")
    poll_loop(A, "pollgu", guloads, [UG+4*i+1 for i in range(8)] + [UG+4*i+3 for i in range(8)], T+1)
    for base, off in ((UG, 0), (UG, 2), (UG+16, 0), (UG+16, 2)):
        A(f"v_add_f32 v{base+off}, v{base+off}, v{base+4+off}")
        A(f"v_add_f32 v{base+8+off}, v{base+8+off}, v{base+12+off}")
        A(f"v_add_f32 v{base+off}, v{base+off}, v{base+8+off}")
        round_bf16(A, base+off)
    gelu(A, UG, T+4, T+5)
    gelu(A, UG+2, T+4, T+5)
    A(f"""
    v_mul_f32 v{UG}, v{UG}, v{UG+16}
    v_mul_f32 v{UG+2}, v{UG+2}, v{UG+18}
    v_cvt_pk_bf16_f32 v{UG}, v{UG}, v{UG+2}
    s_mul_i32 s4, s3, 384
    s_add_u32 s4, s4, {L_OB+256}
    v_lshlrev_b32 v{T+1}, 2, v{L}
    v_add_u32 v{T+2}, s4, v{T+1}
    EXEC 0xffffffff
    ds_write_b32 v{T+2}, v{UG}
    s_mov_b64 exec, -1
    """)
    A("STAMP8")
    CA0 = 140
    A(f"""
    v_subrev_u32 v{CA0+9}, 256, v0
    v_lshrrev_b32 v{CA0}, 7, v{CA0+9}
    v_and_b32 v{CA0+1}, 127, v{CA0+9}
    v_lshlrev_b32 v{CA0+2}, 10, v{CA0}
    v_lshl_add_u32 v{CA0+2}, v{CA0+1}, 3, v{CA0+2}
    v_lshlrev_b32 v{CA0+3}, 3, v{CA0}
    v_add_u32 v{CA0+4}, 65536, v{CA0+2}
    v_add_u32 v{CA0+5}, 65536, v{CA0+3}
    v_lshlrev_b32 v{CA0+6}, {3 if Cfg.PACK else 4}, v{CA0+9}
    v_lshlrev_b32 v{CA0+7}, 4, v{CA0}
    s_lshl_b32 s98, s2, {11 if Cfg.PACK else 12}
    s_add_u32 s98, s98, {WS_PART}
    s_lshl_b32 s99, s2, 5
    s_add_u32 s99, s99, {WS_ML}
    v_mov_b32 v65, v{R.TAGV}
    v_mov_b32 v67, v{R.TAGV}
    v_mov_b32 v69, v{R.TAGV}
    v_mov_b32 v71, v{R.TAGV}
    """)
    X0 = 152
    for i in range(8): A(f"v_mov_b32 v{X0+i}, 0")
    ST3 = f"{name}_pre3"; PREDONE = f"{name}_predone"
    A(f"""
    s_bfe_u32 s6, s2, 0x30003
    s_and_b32 s4, s2, 7
    s_lshr_b32 s5, s2, 6
    s_cmp_eq_u32 s6, 7
    s_cbranch_scc1 {ST3}
    """)
    A(f"""
    s_lshl_b32 s7, s3, 3
    s_add_u32 s7, s7, s4
    s_lshl_b32 s38, s7, {14 if Cfg.PACK else 15}
    s_lshl_b32 s39, s5, {9 if Cfg.PACK else 10}
    s_add_u32 s38, s38, s39
    s_add_u32 s38, s38, {WS_PART}
    s_lshl_b32 s39, s7, 8
    s_lshr_b32 s33, s5, 1
    s_lshl_b32 s33, s33, 4
    s_add_u32 s39, s39, s33
    s_add_u32 s39, s39, {WS_ML}
    v_and_b32 v{X0}, 31, v{L}
    v_lshlrev_b32 v{X0}, 4, v{X0}
    v_lshrrev_b32 v{X0+1}, 5, v{L}
    v_lshl_add_u32 v{X0}, v{X0+1}, 13, v{X0}
    v_and_b32 v{X0+1}, 7, v{L}
    v_lshlrev_b32 v{X0+1}, 5, v{X0+1}
    v_lshrrev_b32 v{X0+2}, 2, v{L}
    v_lshlrev_b32 v{X0+2}, 7, v{X0+2}
    v_and_b32 v{X0+3}, 3, v{L}
    v_lshl_add_u32 v{X0+2}, v{X0+3}, 3, v{X0+2}
    s_lshl_b32 s7, s3, 5
    s_add_u32 s7, s7, {L_STG}
    v_add_u32 v{X0+2}, s7, v{X0+2}
    v_mul_u32_u24 v{X0+3}, 384, v{X0+3}
    v_lshrrev_b32 v{X0+4}, 4, v{L}
    v_lshl_add_u32 v{X0+3}, v{X0+4}, 3, v{X0+3}
    v_add_u32 v{X0+3}, {L_OB}, v{X0+3}
    v_and_b32 v{X0+5}, 15, v{L}
    s_movk_i32 s7, 3584
    v_mul_lo_u32 v{X0+5}, v{X0+5}, s7
    v_lshl_add_u32 v{X0+5}, v{X0+4}, 5, v{X0+5}
    s_lshl_b32 s36, s4, 2
    s_add_u32 s36, s36, s5
    s_mul_i32 s36, s36, {4*448*8}
    s_lshl_b32 s7, s6, 9
    s_add_u32 s36, s36, s7
    s_lshl_b32 s7, s3, 7
    s_add_u32 s36, s36, s7
    s_add_u32 s36, s36, {WS_OUT2}
    s_mul_i32 s7, s3, 384
    s_add_u32 s7, s7, {L_OB}
    v_and_b32 v{X0+6}, 31, v{L}
    v_lshlrev_b32 v{X0+6}, 3, v{X0+6}
    v_add_u32 v{X0+6}, s7, v{X0+6}
    s_mov_b32 s5, 0x000f000f
    s_branch {PREDONE}
    """)
    A(f"{ST3}:")
    A(f"""
    v_lshrrev_b32 v{X0}, 3, v{L}
    s_mov_b32 s7, {4*448*8}
    v_mul_lo_u32 v{X0}, v{X0}, s7
    v_and_b32 v{X0+1}, 7, v{L}
    v_lshl_add_u32 v{X0}, v{X0+1}, 4, v{X0}
    s_mul_i32 s37, s5, {448*8}
    s_lshl_b32 s7, s4, 9
    s_add_u32 s37, s37, s7
    s_lshl_b32 s7, s3, 7
    s_add_u32 s37, s37, s7
    s_add_u32 s37, s37, {WS_OUT2}
    s_mul_i32 s38, s5, 896
    s_lshl_b32 s7, s4, 7
    s_add_u32 s38, s38, s7
    s_lshl_b32 s7, s3, 5
    s_add_u32 s38, s38, s7
    v_lshlrev_b32 v{X0+2}, 2, v{X0+1}
    """)
    srd(A, S_X, P_X, P_X+1, 3584)
    srd(A, S_WA, P_OUT, P_OUT+1, 3584)
    A(f"buffer_load_dword v{X0+3}, v{X0+2}, s[{S_X}:{S_X+3}], s38 offen {Cfg.WL}")
    A(f"{PREDONE}:")
    A("s_waitcnt vmcnt(0) lgkmcnt(0)")
    lds_wait(A, 16, 4, CN, T+8, sleep=4)
    for w in range(4):
        b = CA0+3 if w < 2 else CA0+5
        A(f"ds_read_b64 v[{52+2*w}:{53+2*w}], v{b} offset:{(w&1)*32768+2048}")
    A("s_waitcnt lgkmcnt(0)")
    A("v_max3_f32 v60, v52, v54, v56")
    A("v_max_f32 v60, v60, v58")
    for w in range(4): A(f"v_sub_f32 v{52+2*w}, v{52+2*w}, v60")
    for w in range(4): A(f"v_exp_f32 v{52+2*w}, v{52+2*w}")
    A("v_mov_b32 v68, v60")
    A("v_mul_f32 v70, v53, v52")
    for w in range(1, 4): A(f"v_fmac_f32 v70, v{53+2*w}, v{52+2*w}")
    A(f"""
    v_cmp_eq_u32 vcc, 0, v{CA0+1}
    s_and_saveexec_b64 s[92:93], vcc
    s_cbranch_execz {name}_noml
    buffer_store_dwordx4 v[68:71], v{CA0+7}, s[{S_WS}:{S_WS+3}], s99 offen {Cfg.ST}
    """)
    A(f"{name}_noml:")
    A("s_mov_b64 exec, -1")
    A("s_barrier")
    A("STAMP9")
    for w in range(4):
        a = CA0+2 if w < 2 else CA0+4
        A(f"ds_read_b64 v[{44+2*w}:{45+2*w}], v{a} offset:{(w&1)*32768}")
    A("s_waitcnt lgkmcnt(3)")
    A("v_mul_f32 v64, v44, v52"); A("v_mul_f32 v66, v45, v52")
    for w in range(1, 4):
        A(f"s_waitcnt lgkmcnt({3-w})")
        A(f"v_fmac_f32 v64, v{44+2*w}, v{52+2*w}")
        A(f"v_fmac_f32 v66, v{45+2*w}, v{52+2*w}")
    if Cfg.PACK:
        A("v_cvt_pk_bf16_f32 v64, v64, v66")
        A(f"buffer_store_dwordx2 v[64:65], v{CA0+6}, s[{S_WS}:{S_WS+3}], s98 offen {Cfg.ST}")
    else:
        A(f"buffer_store_dwordx4 v[64:67], v{CA0+6}, s[{S_WS}:{S_WS+3}], s98 offen {Cfg.ST}")
    A("STAMP10")
    A(f"""
    s_cmp_eq_u32 s6, 7
    s_cbranch_scc1 {name}_stage3
    """)
    OG = 44; MG = 76; AW2 = 80
    def oloads():
        A(f"buffer_load_dwordx4 v[{MG}:{MG+3}], v{X0+1}, s[{S_WS}:{S_WS+3}], s39 offen {Cfg.LD}")
        for s_ in range(8):
            A(f"s_add_u32 s33, s38, {s_*4096}")
            A(f"buffer_load_dwordx4 v[{OG+4*s_}:{OG+4*s_+3}], v{X0}, s[{S_WS}:{S_WS+3}], s33 offen {Cfg.LD}")
    def pre2():
        for s_ in range(12):
            A(f"ds_read_b64_tr_b16 v[{AW2+2*s_}:{AW2+2*s_+1}], v{X0+2} offset:{s_*2048}")
    def mlload():
        A(f"buffer_load_dwordx4 v[{MG}:{MG+3}], v{X0+1}, s[{S_WS}:{S_WS+3}], s39 offen {Cfg.LD}")
    poll_loop(A, "poll2a", mlload, [MG+1, MG+3], T+1, first_wait=0, between=pre2, sleep=2)
    A(f"v_mov_b32 v{T+3}, v{MG}")
    for r in (1, 2, 4):
        A("s_nop 1")
        A(f"v_max_f32_dpp v{T+3}, v{T+3}, v{T+3} row_ror:{r} row_mask:0xf bank_mask:0xf")
    A(f"v_sub_f32 v{T+4}, v{MG}, v{T+3}")
    A(f"v_exp_f32 v{T+4}, v{T+4}")
    A("s_nop 0")
    A(f"v_mul_f32 v{T+7}, v{T+4}, v{MG+2}")
    for r in (1, 2, 4):
        A("s_nop 1")
        A(f"v_add_f32_dpp v{T+7}, v{T+7}, v{T+7} row_ror:{r} row_mask:0xf bank_mask:0xf")
    A(f"v_rcp_f32 v{T+7}, v{T+7}")
    A("s_nop 0")
    A(f"v_mul_f32 v{T+4}, v{T+4}, v{T+7}")
    A("s_nop 0")
    for s_ in range(8):
        A(f"v_readlane_b32 s{40+s_}, v{T+4}, {s_}")
    assert Cfg.PACK
    WV = 160
    A("s_nop 1")
    for i in range(4): A(f"v_mov_b32 v{WV+i}, s{40+i}")
    A("s_mov_b32 exec_lo, 0")
    for i in range(4): A(f"v_mov_b32 v{WV+i}, s{44+i}")
    A("s_mov_b32 exec_lo, -1")
    def ol():
        for i in range(4):
            A(f"buffer_load_dwordx4 v[{OG+4*i}:{OG+4*i+3}], v{X0}, s[{S_WS}:{S_WS+3}], s38 offen offset:{(i&1)*2048} {Cfg.LD}" if i < 2 else
              f"buffer_load_dwordx4 v[{OG+4*i}:{OG+4*i+3}], v{X0}, s[{S_WS}:{S_WS+3}], s33 offen offset:{(i&1)*2048} {Cfg.LD}")
    A("s_add_u32 s33, s38, 4096")
    poll_loop(A, "poll2b", ol, [OG+4*i+1 for i in range(4)] + [OG+4*i+3 for i in range(4)], T+1)
    AC = 64
    for i in range(4):
        A(f"v_lshlrev_b32 v{T+2}, 16, v{OG+4*i}")
        A(f"v_and_b32 v{T+3}, 0xffff0000, v{OG+4*i}")
        A(f"v_lshlrev_b32 v{T+4}, 16, v{OG+4*i+2}")
        A(f"v_and_b32 v{T+5}, 0xffff0000, v{OG+4*i+2}")
        for k in range(4):
            if i == 0: A(f"v_mul_f32 v{AC+k}, v{WV}, v{T+2+k}")
            else: A(f"v_fmac_f32 v{AC+k}, v{WV+i}, v{T+2+k}")
    for k in range(4): A(f"v_mov_b32 v{AC+4+k}, v{AC+k}")
    A("s_nop 0")
    for k in range(4): A(f"v_permlane32_swap_b32 v{AC+4+k}, v{AC+k}")
    for k in range(4): A(f"v_add_f32 v{AC+k}, v{AC+k}, v{AC+4+k}")
    A(f"v_cvt_pk_bf16_f32 v{AC}, v{AC}, v{AC+1}")
    A(f"v_cvt_pk_bf16_f32 v{AC+1}, v{AC+2}, v{AC+3}")
    A("STAMP11")
    A(f"""
    s_mov_b32 exec_hi, 0
    ds_write_b64 v{X0+6}, v[64:65]
    s_mov_b32 exec_hi, -1
    s_waitcnt lgkmcnt(0)
    s_barrier
    """)
    for s_ in range(12):
        A(f"ds_read_b64 v[{104+2*s_}:{105+2*s_}], v{X0+3} offset:{s_*32}")
    G2 = 132
    A(f"v_mov_b32 v{G2+1}, v{R.TAGV}"); A(f"v_mov_b32 v{G2+3}, v{R.TAGV}"); A(f"v_mov_b32 v{G2+5}, v{R.TAGV}"); A(f"v_mov_b32 v{G2+7}, v{R.TAGV}")
    for s_ in range(12):
        A(f"s_waitcnt lgkmcnt({11-s_})")
        acc = 40 if s_ % 2 == 0 else 128
        A(f"v_mfma_f32_16x16x16_bf16 v[{acc}:{acc+3}], v[{AW2+2*s_}:{AW2+2*s_+1}], v[{104+2*s_}:{105+2*s_}], {'0' if s_<2 else f'v[{acc}:{acc+3}]'}")
    A(f"s_mov_b32 exec_lo, s5"); A(f"s_mov_b32 exec_hi, s5")
    A("s_nop 5")
    for i in range(4): A(f"v_add_f32 v{G2+2*i}, v{40+i}, v{128+i}")
    A(f"buffer_store_dwordx4 v[{G2}:{G2+3}], v{X0+5}, s[{S_WS}:{S_WS+3}], s36 offen {Cfg.ST}")
    A(f"buffer_store_dwordx4 v[{G2+4}:{G2+7}], v{X0+5}, s[{S_WS}:{S_WS+3}], s36 offen offset:16 {Cfg.ST}")
    A("s_mov_b64 exec, -1")
    A("STAMP12")
    if Asm.stamps: A("s_add_u32 s3, s3, 4")
    stamp_store(A, 13)
    A("s_endpgm")
    A(f"{name}_stage3:")
    A(f"""
    s_cmp_eq_u32 s4, 7
    s_cbranch_scc1 {name}_fin
    """)
    IG = 44
    IGB = 60
    def il(base):
        for i in range(4):
            A(f"s_add_u32 s33, s37, {i*8*4*448*8}")
            A(f"buffer_load_dwordx4 v[{base+4*i}:{base+4*i+3}], v{X0}, s[{S_WS}:{S_WS+3}], s33 offen {Cfg.LD}")
    def itags(base): return [base+4*i+1 for i in range(4)] + [base+4*i+3 for i in range(4)]
    SUM = 80
    def isum(base):
        for off in (0, 2):
            A(f"v_add_f32 v{SUM+off}, v{base+off}, v{base+4+off}")
            A(f"v_add_f32 v{SUM+1+off}, v{base+8+off}, v{base+12+off}")
        for off in (0, 2):
            A(f"v_add_f32 v{SUM+off}, v{SUM+off}, v{SUM+1+off}")
    if Cfg.PIPE3:
        pipe_poll(A, "poll3", il, itags, isum, IG, IGB, 4, T+4, Cfg.PSLEEP)
    else:
        poll_loop(A, "poll3", lambda: il(IG), itags(IG), T+4, sleep=Cfg.SLEEP3)
        isum(IG)
    A("STAMP11")
    IG = SUM
    A("s_nop 0")
    for off in (0, 2):
        A(f"v_add_f32_dpp v{IG+off}, v{IG+off}, v{IG+off} row_ror:8 row_mask:0xf bank_mask:0xf")
    a, b, ta, tb = IG, IG+2, T+5, T+6
    A(f"v_mov_b32 v{ta}, v{a}"); A(f"v_mov_b32 v{tb}, v{b}"); A("s_nop 0")
    A(f"v_permlane16_swap_b32 v{ta}, v{a}"); A(f"v_permlane16_swap_b32 v{tb}, v{b}")
    A(f"v_add_f32 v{a}, v{a}, v{ta}"); A(f"v_add_f32 v{b}, v{b}, v{tb}")
    A(f"v_mov_b32 v{ta}, v{a}"); A(f"v_mov_b32 v{tb}, v{b}"); A("s_nop 0")
    A(f"v_permlane32_swap_b32 v{ta}, v{a}"); A(f"v_permlane32_swap_b32 v{tb}, v{b}")
    A(f"v_add_f32 v{a}, v{a}, v{ta}"); A(f"v_add_f32 v{b}, v{b}, v{tb}")
    A(f"""
    v_lshlrev_b32 v{T+4}, 16, v{X0+3}
    v_and_b32 v{T+5}, 0xffff0000, v{X0+3}
    v_add_f32 v{IG}, v{IG}, v{T+4}
    v_add_f32 v{IG+2}, v{IG+2}, v{T+5}
    v_cvt_pk_bf16_f32 v{IG}, v{IG}, v{IG+2}
    s_mov_b64 exec, 0xff
    buffer_store_dword v{IG}, v{X0+2}, s[{S_WA}:{S_WA+3}], s38 offen
    s_mov_b64 exec, -1
    s_cmp_eq_u32 s2, 56
    s_cbranch_scc0 {name}_fin
    s_cmp_eq_u32 s3, 0
    s_cbranch_scc0 {name}_fin
    v_mov_b32 v{T}, {WS_EPOCH}
    s_mov_b64 exec, 1
    buffer_store_dword v{R.TAGV}, v{T}, s[{S_WS}:{S_WS+3}], 0 offen sc1
    s_mov_b64 exec, -1
    """)
    A(f"{name}_fin:")
    A("STAMP12")
    if Asm.stamps: A("s_add_u32 s3, s3, 4")
    stamp_store(A, 13)
    A(f"{END}:")
    A("s_endpgm")
    return R.NV, 102

def gen(W=8, nt=True, stamps=False, S0=16, SPLITFFN=True, W0=8, KEARLY=0, QZEROFIRST=True, PAUSE=False, LIGHT=0, SLEEP3=0, HALF=False, SIX=False, PSLEEP=3, PACK=True, PIPE2=False, PIPE3=True, TP4=False, ABL='', XL='nt', QL='nt', WL='nt', LD='sc1', ST='sc1'):
    Cfg.W0 = W0; Cfg.KEARLY = KEARLY; Cfg.QZEROFIRST = QZEROFIRST; Cfg.PAUSE = PAUSE; Cfg.LIGHT = LIGHT; Cfg.SLEEP3 = SLEEP3; Cfg.HALF = HALF; Cfg.SIX = SIX; Cfg.PSLEEP = PSLEEP; Cfg.PACK = PACK; Cfg.PIPE2 = PIPE2; Cfg.PIPE3 = PIPE3
    Cfg.TP4 = TP4; Cfg.HI = 131072 if TP4 else 4096; Cfg.ABL = ABL; Cfg.XL = XL; Cfg.QL = QL; Cfg.WL = WL; Cfg.LD = LD; Cfg.ST = ST
    Asm.stamps = stamps
    Cfg.W = W; Cfg.nt = nt; Cfg.S0 = S0; Cfg.SPLITFFN = SPLITFFN
    _lbl[0] = 0
    name = KN + "_kernel"
    body = Asm()
    nv, ns = gen_kernel(body, name)
    out = [f"; @launch grid=(256,1,1) block=(512,1,1) lds={LDS_BYTES}",
           '.amdgcn_target "amdgcn-amd-amdhsa--gfx950"', ".text", body.text(), '.section .rodata,"a"', kernel_desc(name, nv, ns)]
    return "\n".join(out) + "\n"

if __name__ == "__main__":
    import argparse
    ap = argparse.ArgumentParser()
    ap.add_argument("out"); ap.add_argument("--stamps", action="store_true"); ap.add_argument("--W", type=int, default=8); ap.add_argument("--S0", type=int, default=16)
    ap.add_argument("--nosplit", action="store_true"); ap.add_argument("--W0", type=int, default=8); ap.add_argument("--ke", type=int, default=0); ap.add_argument("--pause", action="store_true"); ap.add_argument("--half", action="store_true"); ap.add_argument("--six", action="store_true"); ap.add_argument("--psleep", type=int, default=3); ap.add_argument("--pack", action="store_true"); ap.add_argument("--nopipe2", action="store_true"); ap.add_argument("--nopipe3", action="store_true"); ap.add_argument("--light", type=int, default=0); ap.add_argument("--sleep3", type=int, default=0); ap.add_argument("--tp4", action="store_true"); ap.add_argument("--ABL", default=""); ap.add_argument("--XL", default="nt"); ap.add_argument("--QL", default="nt"); ap.add_argument("--WL", default="nt"); ap.add_argument("--LD", default="sc1"); ap.add_argument("--ST", default="sc1")
    a = ap.parse_args()
    open(a.out, "w").write(gen(W=a.W, stamps=a.stamps, S0=a.S0, SPLITFFN=not a.nosplit, W0=a.W0, KEARLY=a.ke, PAUSE=a.pause, LIGHT=a.light, HALF=a.half, SIX=a.six, PSLEEP=a.psleep, PACK=True, PIPE2=False, PIPE3=not a.nopipe3, SLEEP3=a.sleep3, TP4=a.tp4, ABL=a.ABL, XL=a.XL, QL=a.QL, WL=a.WL, LD=a.LD, ST=a.ST))
    print("WS_STAMP", hex(WS_STAMP), "WS_SIZE", hex(WS_SIZE), "LDS", LDS_BYTES)
```
